```python
import torch

def _softmax(x, axis=-1):
    return torch.softmax(x, dim=axis)

def _gelu(x):
    return torch.nn.functional.gelu(x, approximate='tanh')

def _silu(x):
    return torch.nn.functional.silu(x)

def _sigmoid(x):
    return torch.sigmoid(x)

def _layernorm(x, axis=-1, eps=1e-05):
    m = x.mean(dim=axis, keepdim=True)
    v = x.var(dim=axis, keepdim=True, unbiased=False)
    return (x - m) / torch.sqrt(v + eps)

def _scatter_add(tgt, idx, src, axis=0):
    return tgt.clone().index_add_(axis, idx, src)

def _segment_sum(src, seg, n):
    out = torch.zeros((n,) + src.shape[1:], dtype=src.dtype)
    return out.index_add_(0, seg, src)

def _pad(x, pw):
    flat = tuple((v for pair in reversed(pw) for v in pair))
    return torch.nn.functional.pad(x, flat)
kernel_name = 'interleave_layers__memory_aug_recurrent_mem_tr__glu_gated_geglu__prompt'

def setup_inputs():

    _w = lambda a: (lambda t: t.to(torch.bfloat16) if t.is_floating_point() else t)(torch.as_tensor(a))

    def _A_setup():
        B, S, Dm = (1, 2048, 1024)
        H, Dh = (32, 128)
        M, seg = (8, 32)
        seg = min(seg, S)
        S = S // seg * seg
        return {'x': _w((lambda *s: torch.randn(*s, dtype=torch.bfloat16) * 0.05)(B, S, Dm)), 'mem0': _w((lambda *s: torch.randn(*s, dtype=torch.bfloat16) * 0.2)(B, M, Dm)), 'Wq': _w((lambda *s: torch.randn(*s, dtype=torch.bfloat16) * 1.6)(Dm, H, Dh) * Dm ** (-0.5)), 'Wk': _w((lambda *s: torch.randn(*s, dtype=torch.bfloat16) * 1.6)(Dm, H, Dh) * Dm ** (-0.5)), 'Wv': _w((lambda *s: torch.randn(*s, dtype=torch.bfloat16) * 0.2)(Dm, H, Dh) * Dm ** (-0.5)), 'Wo': _w((lambda *s: torch.randn(*s, dtype=torch.bfloat16) * 0.2)(H, Dh, Dm) * (H * Dh) ** (-0.5)), 'seg_len': seg}
    _A_in = _A_setup()

    def _B_setup():
        B, S, Dm, Df = (1, 2048, 1024, 3584)
        return {'x': _w((lambda *s: torch.randn(*s, dtype=torch.bfloat16) * 0.05)(B, S, Dm)), 'w_gate': _w((lambda *s: torch.randn(*s, dtype=torch.bfloat16) * 0.4)(Dm, Df) * Dm ** (-0.5)), 'w_up': _w((lambda *s: torch.randn(*s, dtype=torch.bfloat16) * 0.4)(Dm, Df) * Dm ** (-0.5)), 'w_down': _w((lambda *s: torch.randn(*s, dtype=torch.bfloat16) * 0.4)(Df, Dm) * Df ** (-0.5))}
    _B_in = _B_setup()
    return {'A_x': _A_in['x'], 'A_mem0': _A_in['mem0'], 'A_Wq': _A_in['Wq'], 'A_Wk': _A_in['Wk'], 'A_Wv': _A_in['Wv'], 'A_Wo': _A_in['Wo'], 'A_seg_len': _A_in['seg_len'], 'B_x': _B_in['x'], 'B_w_gate': _B_in['w_gate'], 'B_w_up': _B_in['w_up'], 'B_w_down': _B_in['w_down']}

def reference(A_x, A_mem0, A_Wq, A_Wk, A_Wv, A_Wo, A_seg_len, B_x, B_w_gate, B_w_up, B_w_down):

    def _A_ref(x, mem0, Wq, Wk, Wv, Wo, seg_len):
        B, S, Dm = x.shape
        H, Dh = (Wq.shape[1], Wq.shape[2])
        M = mem0.shape[1]
        scale = Dh ** (-0.5)
        n_seg = S // seg_len
        L = M + seg_len
        idx = torch.arange(L)
        mask = (idx[:, None] < M) | (idx[:, None] >= idx[None, :])
        mem = mem0
        outs = []
        for s in range(n_seg):
            xs = x[:, s * seg_len:(s + 1) * seg_len, :].clone()
            h = torch.concatenate([mem, xs], axis=1)
            q = torch.einsum('btd,dhe->bhte', h, Wq)
            k = torch.einsum('btd,dhe->bhte', h, Wk)
            v = torch.einsum('btd,dhe->bhte', h, Wv)
            scores = torch.einsum('bhqe,bhke->bhqk', q, k) * scale
            scores = torch.where(mask[None, None], scores, -1000000000.0)
            p = _softmax(scores, axis=-1)
            o = torch.einsum('bhqk,bhke->bhqe', p, v)
            o = torch.einsum('bhte,hed->btd', o, Wo)
            mem = o[:, :M, :].clone()
            outs.append(o[:, M:, :])
        return torch.concatenate(outs, axis=1)

    def _B_ref(x, w_gate, w_up, w_down):
        g = torch.einsum('bsd,df->bsf', x, w_gate)
        u = torch.einsum('bsd,df->bsf', x, w_up)
        h = _gelu(g) * u
        return torch.einsum('bsf,fd->bsd', h, w_down)
    x = A_x
    x = x + _A_ref(_layernorm(x, axis=-1), A_mem0, A_Wq, A_Wk, A_Wv, A_Wo, A_seg_len)
    x = x + _B_ref(_layernorm(x, axis=-1), B_w_gate, B_w_up, B_w_down)
    x = x + _A_ref(_layernorm(x, axis=-1), A_mem0, A_Wq, A_Wk, A_Wv, A_Wo, A_seg_len)
    x = x + _B_ref(_layernorm(x, axis=-1), B_w_gate, B_w_up, B_w_down)
    return x
```

```python
import re

def vr(a, n=1, f="v"):
    return f"{f}{a}" if n == 1 else f"{f}[{a}:{a+n-1}]"
def ar(a, n=1): return vr(a, n, "a")
def sr(a, n=1): return vr(a, n, "s")

_RE = re.compile(r"^(-|\|)?(?:abs\()?([vas])(?:(\d+)|\[(\d+):(\d+)\])\)?\|?$")
def regs_of(tok):
    tok = tok.strip()
    if tok in ("vcc",): return {("s", 106), ("s", 107)}
    if tok == "vcc_lo": return {("s", 106)}
    if tok == "vcc_hi": return {("s", 107)}
    if tok == "exec": return {("s", 126), ("s", 127)}
    if tok == "exec_lo": return {("s", 126)}
    if tok == "exec_hi": return {("s", 127)}
    if tok == "m0": return {("s", 124)}
    m = _RE.match(tok)
    if not m: return set()
    f = m.group(2)
    if m.group(3) is not None: return {(f, int(m.group(3)))}
    return {(f, i) for i in range(int(m.group(4)), int(m.group(5)) + 1)}

TRANS = ("v_exp_f32", "v_log_f32", "v_rcp_f32", "v_rsq_f32", "v_sqrt_f32", "v_sin_f32", "v_cos_f32", "v_rcp_iflag_f32")
class I:
    __slots__ = ("text", "mn", "ops", "mods", "kind", "w", "r", "passes", "srcc", "ab", "states", "target", "label", "data", "dpp")
    def __init__(self, text):
        self.text = text
        t = text.split(";")[0].strip()
        self.label = None; self.target = None; self.kind = "other"
        self.w = set(); self.r = set(); self.passes = 0; self.srcc = set(); self.ab = set(); self.data = set(); self.dpp = False
        self.states = 1; self.mn = ""; self.ops = []; self.mods = []
        if not t or t.startswith("."):
            self.kind = "none"; self.states = 0; return
        if t.endswith(":"):
            self.kind = "label"; self.label = t[:-1]; self.states = 0; return
        p = t.split(None, 1)
        mn = self.mn = p[0]
        rest = p[1] if len(p) > 1 else ""
        ops = []; depth = 0; cur = ""
        for ch in rest + ",":
            if ch in "[(": depth += 1
            elif ch in "])": depth -= 1
            if ch == "," and depth == 0:
                parts = cur.split()
                if parts:
                    ops.append(parts[0]); self.mods += parts[1:]
                cur = ""
            else: cur += ch
        self.ops = ops
        R = [regs_of(o) for o in ops]
        U = lambda l: set().union(*l) if l else set()
        if mn == "s_nop": self.states = int(ops[0], 0) + 1; self.kind = "nop"
        elif mn.startswith("s_cbranch") or mn == "s_branch": self.kind = "branch"; self.target = ops[0]
        elif mn.startswith("v_mfma") or mn.startswith("v_smfmac"):
            self.kind = "mfma"; self.w = R[0]; self.ab = R[1] | R[2]; self.srcc = R[3]; self.r = self.ab | self.srcc
            self.passes = 8 if "32x32" in mn else 4
        elif mn.startswith("v_"):
            self.kind = "valu"
            self.dpp = "_dpp" in mn or any(m.startswith(("row_", "quad_perm")) for m in self.mods)
            if mn.startswith(("v_permlane", "v_swap")):
                self.w = R[0] | R[1]; self.r = R[0] | R[1]
            elif mn.startswith(("v_add_co", "v_sub_co", "v_addc_co")):
                self.w = R[0] | R[1]; self.r = U(R[2:])
            else:
                self.w = R[0]; self.r = U(R[1:])
                if mn.startswith(("v_fmac", "v_dot2c", "v_writelane")) or self.dpp: self.r |= R[0]
                if mn.startswith("v_cmpx"): self.w |= regs_of("exec")
        elif mn.startswith("ds_"):
            self.kind = "ds"
            if mn.startswith(("ds_read", "ds_bpermute", "ds_swizzle")) or "_rtn" in mn: self.w = R[0]; self.r = U(R[1:])
            else: self.r = U(R)
        elif mn.startswith(("buffer_", "global_")):
            self.kind = "vmem"
            if mn.startswith("buffer_load") and "lds" in self.mods: self.r = U(R) | regs_of("m0")
            elif "_load" in mn: self.w = R[0]; self.r = U(R[1:])
            elif "atomic" in mn: self.r = U(R); self.w = R[0] if "sc0" in self.mods else set()
            else:
                self.r = U(R)
                if mn.endswith(("x3", "x4")): self.data = R[0] if mn.startswith("buffer") else R[1]
        elif mn.startswith("s_"):
            self.kind = "salu"
            if mn.startswith(("s_cmp", "s_waitcnt", "s_barrier", "s_endpgm", "s_setprio", "s_sleep", "s_bitcmp")): self.r = U(R)
            else:
                self.w = R[0] if R else set(); self.r = U(R[1:])
                if "saveexec" in mn: self.w |= regs_of("exec")

def need(p, c):
    n = 0
    vg = lambda s: {x for x in s if x[0] in "va"}
    sg = lambda s: {x for x in s if x[0] == "s"}
    if p.kind == "valu":
        pw = vg(p.w); ps = sg(p.w)
        isdot = p.mn.startswith("v_dot")
        if c.kind == "mfma" and pw & c.r: n = max(n, 3 if isdot else 2)
        if c.kind == "mfma" and ps & regs_of("exec"): n = max(n, 4)
        if c.kind == "valu":
            if c.mn.startswith("v_permlane") and pw & c.r: n = max(n, 2)
            if c.dpp and pw & c.r: n = max(n, 2)
            if c.mn.startswith(("v_readlane", "v_readfirstlane")) and pw & c.r: n = max(n, 1)
            if p.mn.startswith(TRANS) and pw & c.r: n = max(n, 1)
            if ps & c.r: n = max(n, 4 if c.mn.startswith(("v_readlane", "v_writelane")) else 2)
            if ps & regs_of("exec") and c.dpp: n = max(n, 5)
            if ps & regs_of("exec") and c.mn.startswith(("v_readlane", "v_readfirstlane", "v_permlane", "v_writelane")): n = max(n, 4)
            if isdot and pw & (c.r | c.w):
                acc_only = c.mn == p.mn and not (pw & set().union(*[regs_of(o) for o in c.ops[1:3]]))
                if not acc_only: n = max(n, 3)
        if isdot and c.kind in ("ds", "vmem") and pw & c.r: n = max(n, 3)
        if c.kind == "vmem" and ps & c.r: n = max(n, 5)
        if c.kind == "salu" and ps & c.r: n = max(n, 2)
    if p.kind == "salu" and ("s", 124) in p.w and c.kind == "vmem" and ("s", 124) in c.r: n = max(n, 1)
    if p.kind == "vmem" and p.data:
        if c.kind == "valu" and p.data & c.w: n = max(n, 2)
        elif p.data & c.w: n = max(n, 2)
    if p.kind == "mfma":
        big = {4: 8, 8: 12}[p.passes]
        if c.kind == "mfma":
            if p.w & c.ab: n = max(n, big)
            if p.w & c.srcc and not (p.w == c.srcc and p.mn == c.mn): n = max(n, big - 2)
            if p.w & c.w and not (p.w == c.w and (p.mn == c.mn or p.w == c.srcc)): n = max(n, big)
        elif c.kind in ("valu", "ds", "vmem"):
            if p.w & (c.r | c.w): n = max(n, big)
            if c.kind == "valu" and p.srcc & c.w: n = max(n, {4: 3, 8: 7}[p.passes])
    return n

class Asm:
    def __init__(self):
        self.L = []; self._u = 0
    def __call__(self, text):
        for line in text.split("\n"):
            self.L.append(line.strip())
    def uniq(self, base):
        self._u += 1
        return f"{base}_{self._u}"
    def label(self, name): self.L.append(name + ":")
    def fix(self, verbose=False):
        ins = [I(t) for t in self.L]
        added = 0
        changed = True
        while changed:
            changed = False
            labels = {x.label: k for k, x in enumerate(ins) if x.label}
            br = {}
            for k, x in enumerate(ins):
                if x.target in labels: br.setdefault(labels[x.target], []).append(k)
            def preds(k):
                out = []
                if k > 0 and not (ins[k-1].mn in ("s_branch", "s_endpgm")): out.append(k - 1)
                out += br.get(k, [])
                return out
            inserts = []
            for k, c in enumerate(ins):
                if c.kind not in ("valu", "mfma", "ds", "vmem", "salu"): continue
                worst = 0
                stack = [(q, 0) for q in preds(k)]; seen = {}
                while stack:
                    q, d = stack.pop()
                    if d >= 13 or seen.get(q, 99) <= d: continue
                    seen[q] = d
                    p = ins[q]
                    if p.kind in ("valu", "mfma", "vmem", "salu"):
                        nn = need(p, c)
                        if nn > d: worst = max(worst, nn - d)
                    for z in preds(q): stack.append((z, d + p.states))
                if worst:
                    inserts.append((k, worst))
                    c_prev_pad = I(f"s_nop {worst-1}")
                    ins.insert(k, c_prev_pad); added += 1
                    if verbose: print("pad", worst, "before", c.text)
                    changed = True
                    break_all = True
                    break
            if changed and len(ins) > 0:
                pass
        self.L = [x.text for x in ins]
        return added
    def fix_fast(self, verbose=False):
        ins = [I(t) for t in self.L]
        pad = [0] * len(ins)
        labels = {x.label: k for k, x in enumerate(ins) if x.label}
        br = {}
        for k, x in enumerate(ins):
            if x.target in labels: br.setdefault(labels[x.target], []).append(k)
        P = []
        for k in range(len(ins)):
            out = []
            if k > 0 and ins[k-1].mn not in ("s_branch", "s_endpgm"): out.append(k - 1)
            P.append(out + br.get(k, []))
        for k, c in enumerate(ins):
            if c.kind not in ("valu", "mfma", "ds", "vmem", "salu"): continue
            worst = 0
            stack = [(q, 0) for q in P[k]]; seen = {}
            while stack:
                q, d = stack.pop()
                if d >= 13 or seen.get(q, 99) <= d: continue
                seen[q] = d
                p = ins[q]
                if p.kind in ("valu", "mfma", "vmem", "salu"):
                    nn = need(p, c)
                    if nn > d: worst = max(worst, nn - d)
                for z in P[q]: stack.append((z, d + p.states + pad[q]))
            pad[k] = worst
            if worst and verbose: print("pad", worst, "before", c.text)
        out = []
        for k, x in enumerate(ins):
            if pad[k]: out.append(f"s_nop {pad[k]-1}")
            out.append(x.text)
        self.L = out
        return sum(1 for p in pad if p)
    def text(self):
        return "\n".join((l if (l.endswith(":") or l.startswith((".", ";"))) else "    " + l) for l in self.L) + "\n"

def kernel_header(name):
    return f".globl {name}\n.p2align 8\n.type {name},@function\n{name}:"
def kernel_desc(name, vgpr=512, accum=256, kernarg=112):
    return (f".amdhsa_kernel {name}\n.amdhsa_next_free_vgpr {vgpr}\n.amdhsa_next_free_sgpr 102\n.amdhsa_accum_offset {accum}\n"
            f".amdhsa_group_segment_fixed_size 0\n.amdhsa_kernarg_size {kernarg}\n.amdhsa_user_sgpr_count 2\n"
            ".amdhsa_user_sgpr_kernarg_segment_ptr 1\n.amdhsa_system_sgpr_workgroup_id_x 1\n"
            ".amdhsa_float_denorm_mode_32 3\n.end_amdhsa_kernel")
```

```python
K = 1024
MB = 1 << 20
F_KV = 0x0000
F_QA = 0x2000
F_WO = 0x4000
F_DN = 0x6000
F_GU = 0x8000
F_LN = 0xC000
DIAG = 0x10000
X1L = 0x40000
X1R = 0x80000
X3  = 0x100000
X2  = 0x200000
KX  = 4 * MB
VX  = 36 * MB
KVM = 68 * MB
XN  = 84 * MB
XR  = 100 * MB
OB  = 112 * MB
HB  = 144 * MB
PW  = 176 * MB
PD  = 200 * MB
WS_END = 224 * MB
WS_BYTES = 256 * MB
OOB = 0x10000000
```

```python
from asmgen import *
from layout import *
from role_r import *

sU = "s19"
sI = "s20"; sC0, sC1 = "s21", "s22"
sMK = ["s[24:25]", "s[26:27]"]
nL, nB, nJ, nSRC, nTHR, nFB = "s28", "s29", "s30", "s31", "s32", "s33"
cL, cB, cJ = "s34", "s35", "s36"
pOFF, pVAL = "s37", "s38"
sRDY, sDMA, sLDS = "s39", "s40", "s41"
bSRC, bPUB, bO0, bO1 = "s42", "s43", "s44", "s45"
T0, T1, T2, T3 = "s92", "s93", "s94", "s95"
vL16, vDMA, vPOLL, vZ, vOUT, vPV = "v0", "v1", "v2", "v3", "v4", "v5"
vRD = ["v6", "v7", "v8"]
PR = 12
ACC = 16
TM = 40
XF = 64
RINGN = 4

def Wn(r): return ("a", r) if r < 256 else ("v", r - 128)
def Wr(r, n=4): return vr(Wn(r)[1], n, Wn(r)[0])

def order_mask(s0, pattern=None):
    seq = [0] * s0; c0 = s0; c1 = 0; k = 0
    while c1 < 64:
        seq.append(1); c1 += 1
        n0 = 1 if pattern is None else pattern[k % len(pattern)]
        k += 1
        for _ in range(n0):
            if c0 < 64: seq.append(0); c0 += 1
    assert len(seq) == 128 and c0 == 64
    return sum(b << i for i, b in enumerate(seq))

def lane_consts(a, layout):
    a("v_mov_b32 v20, v0\nv_lshlrev_b32 v0, 4, v20\nv_mov_b32 v3, 0")
    if layout == "AL": a(f"v_mov_b32 {vDMA}, {vL16}")
    else:
        a(f"v_bfe_u32 v21, v20, 2, 3\nv_lshlrev_b32 v21, 13, v21\nv_lshrrev_b32 v22, 5, v20\nv_lshl_add_u32 v21, v22, 6, v21\nv_and_b32 v22, 3, v20\nv_lshl_add_u32 {vDMA}, v22, 4, v21")
    a(f"v_and_b32 v21, 15, v20\nv_lshlrev_b32 v21, 4, v21\nv_lshrrev_b32 v22, 4, v20\nv_lshl_add_u32 {vRD[0]}, v22, 9, v21")
    a(f"v_add_u32 {vRD[1]}, 0x10000, {vRD[0]}\nv_add_u32 {vRD[2]}, 0x20000, {vRD[0]}")

def poll_off(a, first, count):
    a(f"v_min_u32 v21, {count - 1}, v20\nv_add_u32 v21, {first}, v21\nv_lshlrev_b32 {vPOLL}, 7, v21")

def zero_flags(a, lstride):
    a(f"buffer_store_dword {vZ}, {vZ}, {WS}, {bPUB} offen sc1\ns_add_u32 {T0}, {bPUB}, {lstride}\nbuffer_store_dword {vZ}, {vZ}, {WS}, {T0} offen sc1")

def load_weights(a, units):
    a(f"s_lshl_b32 s46, {sW}, 15")
    def dma(B):
        for k, (S, v, sb, c) in enumerate(units[B][0]):
            a(f"s_add_u32 {T0}, {sb}, {c}\ns_add_u32 m0, s46, {(B % 16) * 2048 + k * 1024}\nbuffer_load_dwordx4 {v}, {S}, {T0} offen lds")
    n = len(units)
    for B in range(min(16, n)): dma(B)
    for B in range(n):
        a(f"s_waitcnt vmcnt({min(30, 2 * (n - 1 - B))})")
        for (r, v, off) in units[B][1]:
            a(f"ds_read_b64_tr_b16 {Wr(r, 2)}, {v} offset:{(B % 16) * 2048 + off}")
        if B + 16 < n: a("s_waitcnt lgkmcnt(0)"); dma(B + 16)
    a("s_waitcnt lgkmcnt(0)")

def stage_addrs(a, rs):
    a(f"s_mov_b32 {T1}, {rs}\ns_lshl_b32 {T2}, {sW}, 15")
    a(f"v_lshrrev_b32 v21, 2, v20\nv_mul_lo_u32 v21, v21, {T1}\nv_and_b32 v22, 3, v20\nv_lshlrev_b32 v23, 4, v22\nv_add_u32 v31, v21, v23")
    a(f"v_lshrrev_b32 v21, 1, v20\nv_mul_lo_u32 v21, v21, {T1}\nv_and_b32 v24, 1, v20\nv_lshl_add_u32 v32, v24, 4, v21")
    a(f"v_lshrrev_b32 v24, 4, v20\nv_bfe_u32 v25, v20, 2, 2\nv_lshl_add_u32 v26, v25, 6, {T2}")
    a(f"v_lshl_add_u32 v27, v24, 9, v26\nv_add_u32 v33, v27, v23\nv_lshl_add_u32 v34, v22, 3, v27")
    a(f"v_lshl_add_u32 v27, v24, 8, v26\nv_add_u32 v35, v27, v23")
    a(f"v_lshl_add_u32 v26, v25, 5, {T2}\nv_lshl_add_u32 v27, v24, 8, v26\nv_lshl_add_u32 v36, v22, 3, v27")

def pair_units(S, sb, rs, nks, nt, t0, mode):
    U = []
    for s in range(nks):
        d = [(S, "v31", sb, (32 * s + 16 * k) * rs) for k in range(2)]
        rd = []
        for t in range(2):
            for u in range(2):
                r = (s * nt + t0 + t) * 4 + 2 * u
                rd.append({"A": (r, "v33", u * 256 + t * 8), "V": (r, "v34", u * 256 + t * 32), "O": (r, "v35", u * 1024 + t * 8)}[mode])
        U.append((d, rd))
    return U

def next_job(a, src_l, src_b, flag_base, flag_l, l0_ready):
    a(f"s_cmp_lt_u32 {sI}, 64\ns_cselect_b64 s[92:93], {sMK[0]}, {sMK[1]}\ns_bitcmp1_b64 s[92:93], {sI}\ns_cselect_b32 {nL}, 1, 0\ns_cselect_b32 {nB}, {sC1}, {sC0}")
    a(f"s_add_u32 {sC1}, {sC1}, {nL}\ns_xor_b32 {T0}, {nL}, 1\ns_add_u32 {sC0}, {sC0}, {T0}")
    a(f"s_lshl_b32 {nJ}, {nL}, 6\ns_add_u32 {nJ}, {nJ}, {nB}")
    a(f"s_mul_i32 {T0}, {nL}, {src_l}\ns_mul_i32 {T1}, {nB}, {src_b}\ns_add_u32 {nSRC}, {T0}, {T1}\ns_add_u32 {nSRC}, {nSRC}, {bSRC}")
    a(f"s_add_u32 {nTHR}, {nB}, 1")
    if l0_ready: a(f"s_mul_i32 {nTHR}, {nTHR}, {nL}\ns_mov_b32 {nFB}, {flag_base}")
    else: a(f"s_mul_i32 {nFB}, {nL}, {flag_l}\ns_add_u32 {nFB}, {nFB}, {flag_base}")
    a(f"s_cmp_lt_u32 {sI}, 128\ns_cselect_b32 {nSRC}, {nSRC}, {OOB}\ns_cselect_b32 {nTHR}, {nTHR}, 0\ns_add_u32 {sI}, {sI}, 1")

POLL = f"buffer_load_dwordx4 {vr(PR, 4)}, {vPOLL}, {WS}, {nFB} offen sc1"
PCHK = f"v_min3_u32 v{PR}, v{PR}, v{PR+1}, v{PR+2}\nv_min_u32 v{PR}, v{PR}, v{PR+3}\nv_cmp_gt_u32 vcc, {nTHR}, v{PR}"
PUB = f"v_mov_b32 {vPV}, {pVAL}\nbuffer_store_dword {vPV}, {vZ}, {WS}, {pOFF} offen sc1"

class Gemm:
    def __init__(self, a, name, tiles, nks, layout, nj, pub_l, epilogue, nstores, xs, code, overlap=0, last=128, diag=False, hooks=None):
        self.__dict__.update(locals()); self.nt = len(tiles); self.hooks = hooks or {}
        n = 2 * nks
        if overlap: self.addr = lambda p, s: ((nks - 1 - s) * 2048 if p == 0 else 163840 - nks * 2048 + s * 2048)
        else: self.addr = lambda p, s: p * nks * 2048 + s * 2048
        self.nd = (n + 3) // 4
    def dmas(self, p):
        out = []
        ks = list(range(self.nd))
        if self.overlap:
            ov = self.overlap // 2
            ks = ks[ov:] + ks[:ov]
        for k in ks:
            s = 2 * k
            tail = (4 * k + 3 >= 2 * self.nks)
            sl = f"s{46 + p}"
            base = self.addr(p, s)
            if self.layout == "AL":
                src = T3 if tail else T2
                pre = f"s_add_u32 {T2}, {sDMA}, {k * 4096}\n"
                if tail: pre += f"s_cmp_lt_u32 {sW}, 2\ns_cbranch_scc0 ${{skip}}\n"
                ins = pre + f"s_add_u32 m0, {sl}, {base}\nbuffer_load_dwordx4 {vDMA}, {WS}, {T2} offen sc1 lds"
            else:
                io = (k % 8) * 512
                pre = f"s_add_u32 {T2}, {sDMA}, {(k // 8) * 4096}\n" if k % 8 == 0 else ""
                ins = pre + f"s_add_u32 m0, {sl}, {base - io}\nbuffer_load_dwordx4 {vDMA}, {WS}, {T2} offen offset:{io} sc1 lds"
            if tail:
                l = self.a.uniq("L_sk"); ins = ins.replace("${skip}", l) + f"\n{l}:"
            out.append(ins)
        return out
    def setup(self):
        a = self.a
        for p in range(2):
            d = -2048 if (self.overlap and p == 0) else 2048
            a(f"s_lshr_b32 {T0}, {sW}, 1\ns_mul_i32 {T0}, {T0}, {d}\ns_and_b32 {T1}, {sW}, 1\ns_lshl_b32 {T1}, {T1}, 10\ns_add_u32 s{46 + p}, {T0}, {T1}")
    def rd(self, p, s, tt):
        ad = self.addr(p, s) + tt * 256
        return f"ds_read_b128 {vr(XF + 8 * (s % RINGN) + 4 * tt, 4)}, {vRD[ad >> 16]} offset:{ad & 0xffff}"
    def fetch_blocking(self, p, tag):
        a = self.a; l = f"L_{self.name}_sp{tag}"; d = l + "d"
        a("s_mov_b32 s3, 0"); a.label(l)
        a(f"{POLL}\ns_waitcnt vmcnt(0)\n{PCHK}\ns_cbranch_vccz {d}")
        spin_tail(a, l, self.code)
        a.label(d)
        a(f"s_mov_b32 {sDMA}, {nSRC}")
        for x in self.dmas(p): a(x)
        a("s_waitcnt vmcnt(0)")
    def emit(self):
        a = self.a; nm = self.name; H = self.hooks
        self.setup()
        a(f"s_mov_b32 {sI}, 0\ns_mov_b32 {sC0}, 0\ns_mov_b32 {sC1}, 0\ns_mov_b32 {pOFF}, {OOB}\ns_mov_b32 {pVAL}, 0")
        if 'init' in H: H['init']()
        self.nj()
        a("s_barrier")
        self.fetch_blocking(0, "i")
        slow = []
        a.label(f"L_{nm}_loop")
        for p in range(2):
            a("s_barrier")
            if 'shift' in H: H['shift']()
            a(f"s_mov_b32 {cL}, {nL}\ns_mov_b32 {cB}, {nB}\ns_mov_b32 {cJ}, {nJ}")
            if 'head' in H: H['head'](p)
            for s in range(RINGN - 1): a(self.rd(p, s, 0)); a(self.rd(p, s, 1))
            self.nj()
            a(POLL)
            if 'poll' in H: H['poll']()
            dm = (H['dmas'](p) if 'dmas' in H else []) + self.dmas(1 - p) + (H['loads']() if 'loads' in H else [])
            span = self.nks - self.xs - 2
            done = 0
            for s in range(self.nks):
                if s == self.xs:
                    a(f"s_waitcnt vmcnt(0)\n{PCHK}\n{PUB}")
                    if self.overlap or 'mid' in H: a("s_barrier")
                    if 'mid' in H: H['mid']()
                a(f"s_waitcnt lgkmcnt({2 * min(RINGN - 2, self.nks - 1 - s)})")
                k = 0
                for tt in range(2):
                    for t, o in enumerate(self.tiles):
                        acc = vr(ACC + 4 * (tt * self.nt + t), 4); X = vr(XF + 8 * (s % RINGN) + 4 * tt, 4); Wt = Wr((s * self.nt + t) * 4)
                        A, B = (Wt, X) if o == "T" else (X, Wt)
                        a(f"v_mfma_f32_16x16x32_bf16 {acc}, {A}, {B}, {'0' if s == 0 else acc}")
                        if k < 2 and s + RINGN - 1 < self.nks: a(self.rd(p, s + RINGN - 1, k))
                        if k == 2 and s == self.xs:
                            a(f"s_cmp_eq_u64 vcc, 0\ns_cselect_b32 {sRDY}, 1, 0\ns_cselect_b32 {sDMA}, {nSRC}, {OOB}")
                        if k >= 2 and s > self.xs and done < len(dm) and done * span < (s - self.xs) * len(dm):
                            a(dm[done]); done += 1
                        k += 1
            while done < len(dm): a(dm[done]); done += 1
            self.epilogue(p)
            if 'pub' in H: H['pub']()
            else: a(f"s_mul_i32 {pOFF}, {cL}, {self.pub_l}\ns_add_u32 {pOFF}, {pOFF}, {bPUB}\ns_add_u32 {pVAL}, {cB}, 1")
            a(f"s_cmp_gt_u32 {sI}, {self.last}\ns_cbranch_scc1 L_{nm}_done")
            a(f"s_cmp_eq_u32 {sRDY}, 0\ns_cbranch_scc1 L_{nm}_slow{p}")
            a(f"s_waitcnt vmcnt({self.nstores})")
            a.label(f"L_{nm}_back{p}")
        a(f"s_branch L_{nm}_loop")
        for p in range(2):
            a.label(f"L_{nm}_slow{p}")
            a(f"s_waitcnt vmcnt(0)\n{PUB}")
            self.fetch_blocking(1 - p, str(p))
            a(f"s_branch L_{nm}_back{p}")
        if 'extra' in H: H['extra']()
        a.label(f"L_{nm}_done")
        a(f"s_waitcnt vmcnt(0)\n{PUB}")
        end_role(a, self.diag)

def end_role(a, diag):
    if diag:
        a(f"s_memrealtime s[92:93]\ns_waitcnt lgkmcnt(0)\ns_sub_u32 s92, s92, s90")
        a(f"s_lshl_b32 s94, {sXC}, 5\ns_add_u32 s94, s94, {sSLOT}\ns_lshl_b32 s94, s94, 2\ns_add_u32 s94, s94, {sW}\ns_lshl_b32 s94, s94, 4\ns_add_u32 s94, s94, {DIAG}")
        a(f"v_mov_b32 v20, s92\nv_mov_b32 v21, s98\nv_mov_b32 v22, {sU}\nv_mov_b32 v23, 0\nv_mov_b32 v24, 0\nbuffer_store_dwordx4 v[20:23], v24, {WS}, s94 offen")
    a("s_endpgm")
def mark_start(a, diag):
    if diag: a("s_memrealtime s[98:99]\ns_waitcnt lgkmcnt(0)\ns_sub_u32 s98, s98, s90")

def set_mask(a, m):
    for k in range(4): a(f"s_mov_b32 s{24 + k}, {hex((m >> (32 * k)) & 0xffffffff)}")
cvt = lambda T, A, k: f"v_cvt_pk_bf16_f32 v{T + k}, v{A + 2*k}, v{A + 2*k + 1}"

def role_KV(a, kind, mask, diag, opt):
    nm = "KV" + kind
    a.label("L_role_" + nm)
    lane_consts(a, "Q4"); poll_off(a, 0, 8); set_mask(a, mask)
    hd = "s48"
    if kind == "A":
        a(f"s_mov_b32 {hd}, {sU}\ns_lshl_b32 {T0}, {sW}, 2")
        a(f"s_lshl_b32 {T1}, {sW}, 11\ns_add_u32 {bO0}, {T1}, {KX}\ns_lshl_b32 {T1}, {sW}, 10\ns_add_u32 {bO1}, {T1}, {VX}")
    else:
        a(f"s_lshr_b32 {T0}, {sW}, 1\ns_lshl_b32 {hd}, {sU}, 1\ns_add_u32 {hd}, {hd}, {T0}\ns_and_b32 {T1}, {sW}, 1\ns_lshl_b32 {T0}, {T1}, 2\ns_add_u32 {T0}, {T0}, 16")
        a(f"s_lshl_b32 {T1}, {T1}, 11\ns_add_u32 {bO1}, {T1}, {VX + 4096}\ns_mov_b32 {bO0}, 0")
    a(f"s_lshl_b32 {T1}, {hd}, 7\ns_add_u32 {bPUB}, {T0}, {T1}\ns_add_u32 {bPUB}, {bPUB}, {F_KV}")
    a(f"s_lshl_b32 {T1}, {hd}, 13\ns_add_u32 {bO0}, {bO0}, {T1}\ns_add_u32 {bO1}, {bO1}, {T1}")
    a(f"s_lshl_b32 {T0}, {sW}, 7\ns_add_u32 {bSRC}, {T0}, {XN}")
    zero_flags(a, 4096)
    stage_addrs(a, 8192)
    arrive(a)
    srd(a, 8, P_WK, 8 * MB); srd(a, 52, P_WV, 8 * MB)
    a(f"s_lshl_b32 {T0}, {hd}, 8")
    if kind == "A":
        a(f"s_lshl_b32 {T1}, {sW}, 6\ns_add_u32 s49, {T0}, {T1}\ns_lshl_b32 {T1}, {sW}, 5\ns_add_u32 s50, {T0}, {T1}")
        U = pair_units("s[8:11]", "s49", 8192, 32, 3, 0, "A")
        for s2 in range(16):
            U.append(([("s[52:55]", "v32", "s50", 32 * (2 * s2 + k) * 8192) for k in range(2)],
                      [(((2 * s2 + k) * 3 + 2) * 4 + 2 * u, "v36", k * 1024 + u * 128) for k in range(2) for u in range(2)]))
        tiles = ["T", "T", "N"]
    else:
        a(f"s_and_b32 {T1}, {sW}, 1\ns_lshl_b32 {T1}, {T1}, 6\ns_add_u32 {T1}, {T1}, 128\ns_add_u32 s50, {T0}, {T1}")
        U = pair_units("s[52:55]", "s50", 8192, 32, 2, 0, "V")
        tiles = ["N", "N"]
    load_weights(a, U)
    wait_start(a, 10); mark_start(a, diag)
    nt = len(tiles)
    def epi(p):
        a(f"s_lshl_b32 {T0}, {cJ}, 18\ns_add_u32 {T1}, {T0}, {bO1}\ns_add_u32 {T0}, {T0}, {bO0}")
        q = 0
        if kind == "A":
            for tt in range(2):
                for k in range(4): a(cvt(TM + 4 * q, ACC + 12 * tt, k))
                a(f"buffer_store_dwordx4 {vr(TM + 4 * q, 4)}, {vL16}, {WS}, {T0} offen offset:{tt * 1024} sc1"); q += 1
        for x, t in enumerate([2] if kind == "A" else [0, 1]):
            for tt in range(2):
                for k in range(2): a(cvt(TM + 4 * q + 2 * tt, ACC + 4 * (tt * nt + t), k))
            a(f"buffer_store_dwordx4 {vr(TM + 4 * q, 4)}, {vL16}, {WS}, {T1} offen offset:{x * 1024} sc1"); q += 1
    Gemm(a, nm, tiles, 32, "Q4", lambda: next_job(a, 8 * MB, 65536, F_LN + 1024, 0, True), 4096, epi, nt, opt.get('xs' + nm, 9 if kind == "A" else 12), 11, diag=diag).emit()

def role_GU(a, mask, diag, opt):
    a.label("L_role_GU")
    lane_consts(a, "Q4"); poll_off(a, 0, 8); set_mask(a, mask)
    a(f"s_lshl_b32 {T0}, {sU}, 7\ns_lshl_b32 {T1}, {sW}, 2\ns_add_u32 {bPUB}, {T0}, {T1}\ns_add_u32 {bPUB}, {bPUB}, {F_GU}")
    a(f"s_lshl_b32 {T0}, {sU}, 2\ns_add_u32 {T0}, {T0}, {sW}\ns_lshl_b32 s49, {T0}, 5\ns_lshl_b32 {T0}, {T0}, 10\ns_add_u32 {bO0}, {T0}, {HB}")
    a(f"s_lshl_b32 {T0}, {sW}, 7\ns_add_u32 {bSRC}, {T0}, {XN + 4 * MB}")
    zero_flags(a, 8192)
    stage_addrs(a, 7168)
    arrive(a)
    srd(a, 8, P_WG, 7 * MB); srd(a, 52, P_WU, 7 * MB)
    U = [([(S, "v32", "s49", 32 * s * 7168) for S in ("s[8:11]", "s[52:55]")],
          [((s * 2 + t) * 4 + 2 * u, "v36", t * 1024 + u * 128) for t in range(2) for u in range(2)]) for s in range(32)]
    load_weights(a, U)
    wait_start(a, 12); mark_start(a, diag)
    k0 = -2 * math.log2(math.e) * math.sqrt(2 / math.pi)
    a(f"s_mov_b32 s50, {hex(f2u(k0 * 0.044715))}\ns_mov_b32 s51, s50\nv_mov_b32 v10, {hex(f2u(k0))}")
    def epi(p):
        G = lambda tt: ACC + 8 * tt; Uu = lambda tt: ACC + 8 * tt + 4
        a(f"s_lshl_b32 {T0}, {cJ}, 18\ns_add_u32 {T0}, {T0}, {bO0}")
        prs = [(G(tt) + 2 * k, Uu(tt) + 2 * k, TM + 4 * tt + 2 * k) for tt in range(2) for k in range(2)]
        for g, u, t in prs: a(f"v_pk_mul_f32 {vr(t, 2)}, {vr(g, 2)}, {vr(g, 2)}")
        for g, u, t in prs: a(f"v_pk_fma_f32 {vr(t, 2)}, {vr(t, 2)}, s[50:51], v[10:11] op_sel_hi:[1,1,0]")
        for g, u, t in prs: a(f"v_pk_mul_f32 {vr(t, 2)}, {vr(t, 2)}, {vr(g, 2)}")
        for k in range(8): a(f"v_exp_f32 v{TM + k}, v{TM + k}")
        for g, u, t in prs: a(f"v_pk_mul_f32 {vr(u, 2)}, {vr(u, 2)}, {vr(g, 2)}")
        for g, u, t in prs: a(f"v_pk_add_f32 {vr(t, 2)}, {vr(t, 2)}, 1.0 op_sel_hi:[1,0]")
        for k in range(8): a(f"v_rcp_f32 v{TM + k}, v{TM + k}")
        for g, u, t in prs: a(f"v_pk_mul_f32 {vr(t, 2)}, {vr(t, 2)}, {vr(u, 2)}")
        for k in range(4): a(cvt(TM + 8, TM, k))
        a(f"v_permlane16_swap_b32 v{TM + 8}, v{TM + 10}\nv_permlane16_swap_b32 v{TM + 9}, v{TM + 11}")
        a(f"buffer_store_dwordx4 {vr(TM + 8, 4)}, {vL16}, {WS}, {T0} offen sc1")
    Gemm(a, "GU", ["T", "T"], 32, "Q4", lambda: next_job(a, 8 * MB, 65536, F_LN, 2048, False), 8192, epi, 1, opt.get('xsGU', 12), 13, diag=diag).emit()

def role_P(a, nm, mask, diag, opt):
    wo = nm == "WO"
    nks = 43 if wo else 38
    a.label("L_role_" + nm)
    lane_consts(a, "AL"); set_mask(a, mask)
    sl, cg, k0 = "s48", "s49", "s50"
    a(f"s_lshr_b32 {sl}, {sU}, 3\ns_and_b32 {cg}, {sU}, 7")
    if wo: a(f"s_mul_i32 {k0}, {sl}, 43\ns_min_u32 {k0}, {k0}, 85\ns_lshr_b32 {T0}, {k0}, 2\ns_min_u32 {T0}, {T0}, 20"); poll_off(a, T0, 12)
    else: a(f"s_mul_i32 {k0}, {sl}, 37\ns_lshr_b32 {T0}, {k0}, 1\ns_min_u32 {T0}, {T0}, 36"); poll_off(a, T0, 20)
    a(f"s_lshl_b32 {T0}, {sU}, 7\ns_lshl_b32 {T1}, {sW}, 2\ns_add_u32 {bPUB}, {T0}, {T1}\ns_add_u32 {bPUB}, {bPUB}, {F_WO if wo else F_DN}")
    a(f"s_lshl_b32 {T0}, {k0}, 11\ns_lshl_b32 {T1}, {sW}, 10\ns_add_u32 {bSRC}, {T0}, {T1}\ns_add_u32 {bSRC}, {bSRC}, {OB if wo else HB}")
    a(f"s_lshl_b32 {T0}, {sl}, 16\ns_lshl_b32 {T1}, {cg}, 10\ns_add_u32 {T0}, {T0}, {T1}\ns_lshl_b32 {T1}, {sW}, 8\ns_add_u32 {T0}, {T0}, {T1}\ns_add_u32 {bO0}, {T0}, {PW if wo else PD}")
    a(f"v_bfe_u32 v21, v20, 2, 2\nv_lshlrev_b32 v21, 13, v21\nv_lshrrev_b32 v22, 4, v20\nv_lshl_add_u32 v21, v22, 6, v21\nv_and_b32 v22, 3, v20\nv_lshl_add_u32 {vOUT}, v22, 4, v21")
    zero_flags(a, 4096)
    stage_addrs(a, 2048)
    arrive(a)
    srd(a, 8, P_WO if wo else P_WD, (8 if wo else 7) * MB)
    a(f"s_lshl_b32 {T0}, {k0}, 16\ns_lshl_b32 {T1}, {cg}, 8\ns_add_u32 {T0}, {T0}, {T1}\ns_lshl_b32 {T1}, {sW}, 6\ns_add_u32 s51, {T0}, {T1}")
    load_weights(a, pair_units("s[8:11]", "s51", 2048, nks, 2, 0, "O" if wo else "A"))
    l = a.uniq("L_z")
    a(f"s_cmp_lt_u32 {sl}, {2 if wo else 1}\ns_cbranch_scc1 {l}")
    for r in range(8): a(f"v_accvgpr_write_b32 a{r}, 0")
    a.label(l)
    wait_start(a, 14); mark_start(a, diag)
    def epi(p):
        a(f"s_mul_i32 {T0}, {cJ}, {192 * 1024}\ns_add_u32 {T0}, {T0}, {bO0}\ns_add_u32 {T1}, {T0}, 32768")
        for tt in range(2):
            for k in range(4): a(cvt(TM + 4 * tt, ACC + 8 * tt, k))
            a(f"buffer_store_dwordx4 {vr(TM + 4 * tt, 4)}, {vOUT}, {WS}, {(T0, T1)[tt]} offen sc1")
    nj = (lambda: next_job(a, 16 * MB, 262144, F_QA, 4096, False)) if wo else (lambda: next_job(a, 16 * MB, 262144, F_GU, 8192, False))
    Gemm(a, nm, ["T", "T"], nks, "AL", nj, 4096, epi, 2, opt.get('xs' + nm, 13), 15 if wo else 16, overlap=6 if wo else 0, diag=diag).emit()
```

```python
from role_g import *

def role_QA(a, mask, diag, opt):
    a.label("L_role_QA")
    lane_consts(a, "Q4"); poll_off(a, 0, 8); set_mask(a, mask)
    LQ, LK, LV = 0x20000, 0x24000, 0x26000
    aL, aB, aJ, aV = "s48", "s49", "s50", "s51"
    zL, zB, zJ, zV = "s56", "s57", "s58", "s59"
    cV, kRDY, zRDY, dKX, dKVM, zKVM, zKX, fKV, tKV = "s60", "s61", "s62", "s63", "s64", "s65", "s66", "s67", "s70"
    bKX, bKVM, bFK, sNC = "s71", "s72", "s73", "s74"; sCC = "s[76:77]"
    vQW, vQR, vKR, vVR, vKM, vVM, vF6, vCHK = "v9", "v10", "v11", "v96", "v97", "v98", "v99", "v100"
    FK = 101; ONES = 104; CI = 108
    QF, KF, VF, KM, VM = 128, 144, 176, 192, 208
    S, PX, PM, LL, MX, OO, OT, SENT = 216, 228, 232, 236, 240, 32, 48, 120
    a(f"s_lshl_b32 {T0}, {sU}, 7\ns_add_u32 {bFK}, {T0}, {F_KV}\ns_lshl_b32 {T1}, {sW}, 2\ns_add_u32 {bPUB}, {T0}, {T1}\ns_add_u32 {bPUB}, {bPUB}, {F_QA}")
    a(f"s_lshl_b32 {T0}, {sW}, 7\ns_add_u32 {bSRC}, {T0}, {XN}")
    a(f"s_lshl_b32 {T0}, {sU}, 13\ns_add_u32 {bKX}, {T0}, {KX}\ns_lshl_b32 {T1}, {sU}, 12\ns_add_u32 {bKVM}, {T1}, {KVM}")
    a(f"s_lshr_b32 {T2}, {sW}, 1\ns_and_b32 {T3}, {sW}, 1")
    a(f"s_lshl_b32 {T1}, {T2}, 12\ns_add_u32 {T0}, {T0}, {T1}\ns_add_u32 {bO0}, {T0}, {OB}")
    a(f"s_add_u32 {T1}, {T1}, {LV}\nv_add_u32 {vVR}, {T1}, {vL16}\nv_add_u32 {vKR}, {LK}, {vL16}")
    a(f"s_lshl_b32 {T0}, {sW}, 11\ns_add_u32 {T0}, {T0}, {LQ}\nv_add_u32 {vQW}, {T0}, {vL16}")
    a(f"s_lshl_b32 {T0}, {T3}, 10\ns_add_u32 {T0}, {T0}, {LQ}\nv_add_u32 {vQR}, {T0}, {vL16}")
    a(f"s_lshl_b32 {T0}, {T3}, 8\nv_add_u32 {vOUT}, {T0}, {vRD[0]}")
    a(f"v_mov_b32 v22, 0x40000000\nv_lshrrev_b32 v23, 4, v20\nv_and_b32 v24, 15, v20       ; g, m")
    a(f"v_lshlrev_b32 v25, 7, v23\nv_lshl_add_u32 v25, v24, 4, v25\nv_cmp_gt_u32 vcc, 8, v24\nv_cndmask_b32 {vKM}, v22, v25, vcc")
    a(f"s_lshl_b32 {T0}, {T2}, 10\ns_add_u32 {T0}, {T0}, 2048\nv_add_u32 v25, {T0}, {vL16}\nv_cmp_gt_u32 vcc, 32, v20\nv_cndmask_b32 {vVM}, v22, v25, vcc")
    a(f"v_min_u32 v25, 5, v20\nv_lshlrev_b32 {vF6}, 2, v25")
    a(f"v_mov_b32 v22, 0xff800000")
    for e in range(4): a(f"v_cndmask_b32 v{CI + 8 + e}, v22, {vZ}, vcc\nv_mov_b32 v{ONES + e}, 0x3f803f80\nv_mov_b32 v{SENT + e}, -1")
    a(f"s_lshl_b32 {T0}, {T3}, 4\nv_add_u32 v24, {T0}, v24\nv_lshlrev_b32 v23, 2, v23")
    for tt in range(2):
        for e in range(4): a(f"v_add_u32 v25, {16 * tt + e}, v23\nv_cmp_le_u32 vcc, v25, v24\nv_cndmask_b32 v{CI + 4 * tt + e}, v22, {vZ}, vcc")
    c = 128 ** -0.5 * math.log2(math.e)
    zero_flags(a, 4096)
    a(f"s_lshl_b32 {T0}, {sW}, 10\ns_add_u32 {T0}, {T0}, {bKVM}")
    for k in range(32): a(f"buffer_store_dwordx4 {vr(SENT, 4)}, {vL16}, {WS}, {T0} offen sc1\ns_add_u32 {T0}, {T0}, {1 << 17}")
    stage_addrs(a, 8192)
    arrive(a)
    srd(a, 8, P_WQ, 8 * MB)
    a(f"s_lshl_b32 {T0}, {sU}, 8\ns_lshl_b32 {T1}, {sW}, 6\ns_add_u32 s49, {T0}, {T1}")
    load_weights(a, pair_units("s[8:11]", "s49", 8192, 32, 2, 0, "A"))
    wait_start(a, 17); mark_start(a, diag)
    a(f"s_mov_b32 s76, {hex(f2u(c))}\ns_mov_b32 s77, s76\ns_mov_b32 {sNC}, {hex(f2u(-c))}")
    H = {}
    def chk(regs):
        a(f"v_max3_u32 {vCHK}, v{regs[0]}, v{regs[1]}, v{regs[2]}\nv_max_u32 {vCHK}, {vCHK}, v{regs[3]}")
        for k in range(4, len(regs), 2): a(f"v_max3_u32 {vCHK}, {vCHK}, v{regs[k]}, v{regs[k+1]}")
        a(f"v_cmp_eq_u32 vcc, -1, {vCHK}")
    ldm = lambda s: [f"buffer_load_dwordx4 {vr(KM + 4 * p, 4)}, {vKM}, {WS}, {s} offen offset:{p * 512} sc1" for p in range(4)] + \
                    [f"buffer_load_dwordx4 {vr(VM + 4 * p, 4)}, {vVM}, {WS}, {s} offen offset:{p * 512} sc1" for p in range(2)]
    H['init'] = lambda: a(f"s_mov_b32 {aV}, 0\ns_mov_b32 {cV}, 0\ns_mov_b32 {kRDY}, 1\ns_mov_b32 {dKVM}, {OOB}\ns_mov_b32 {dKX}, {OOB}\ns_mov_b32 {aL}, 0\ns_mov_b32 {aB}, 0\ns_mov_b32 {aJ}, 0\ns_mov_b32 {cL}, 0\ns_mov_b32 {cB}, 0\ns_mov_b32 {cJ}, 0")
    def shift():
        a(f"s_mov_b32 {zL}, {aL}\ns_mov_b32 {zB}, {aB}\ns_mov_b32 {zJ}, {aJ}\ns_mov_b32 {zV}, {aV}\ns_mov_b32 {zKVM}, {dKVM}\ns_mov_b32 {zKX}, {dKX}")
        a(f"s_mov_b32 {aL}, {cL}\ns_mov_b32 {aB}, {cB}\ns_mov_b32 {aJ}, {cJ}\ns_mov_b32 {aV}, {cV}\ns_cmp_le_u32 {sI}, 128\ns_cselect_b32 {cV}, 1, 0")
    H['shift'] = shift
    extra = []
    def head(p):
        sk = a.uniq("L_qa_sk"); bk = a.uniq("L_qa_bk"); sl = a.uniq("L_qa_sl")
        a(f"s_mov_b32 {pOFF}, {OOB}\ns_cmp_eq_u32 {zV}, 0\ns_cbranch_scc1 {sk}")
        for q in range(4):
            a(f"ds_read_b128 {vr(QF + 4 * q, 4)}, {vQR} offset:{p * 8192 + q * 2048}")
            for tt in range(2): a(f"ds_read_b128 {vr(KF + 8 * q + 4 * tt, 4)}, {vKR} offset:{q * 2048 + tt * 1024}")
        chk(list(range(KM, KM + 24)))
        a(f"s_mul_i32 {pOFF}, {zL}, 4096\ns_add_u32 {pOFF}, {pOFF}, {bPUB}\ns_add_u32 {pVAL}, {zB}, 1\ns_lshl_b32 {T0}, {zJ}, 18\ns_add_u32 {T0}, {T0}, {bO0}")
        a(f"s_cbranch_vccnz {sl}")
        a.label(bk)
        extra.append((sl, bk))
        for q in range(4):
            a(f"s_waitcnt lgkmcnt({9 - 3 * q + q})")
            for tt in range(3):
                A = vr(KF + 8 * q + 4 * tt, 4) if tt < 2 else vr(KM + 4 * q, 4)
                a(f"v_mfma_f32_16x16x32_bf16 {vr(S + 4 * tt, 4)}, {A}, {vr(QF + 4 * q, 4)}, {vr((CI if q == 0 else S) + 4 * tt, 4)}")
                if tt == 0: a(f"ds_read_b128 {vr(VF + 4 * q, 4)}, {vVR} offset:{q * 1024}")
        s = list(range(S, S + 12))
        a(f"v_max3_f32 v{MX}, v{s[0]}, v{s[1]}, v{s[2]}\nv_max3_f32 v{MX+1}, v{s[3]}, v{s[4]}, v{s[5]}\nv_max3_f32 v{MX}, v{MX}, v{s[6]}, v{s[7]}")
        a(f"v_max3_f32 v{MX+1}, v{MX+1}, v{s[8]}, v{s[9]}\nv_max3_f32 v{MX+2}, v{MX}, v{s[10]}, v{s[11]}\nv_max_f32 v{MX}, v{MX+2}, v{MX+1}\nv_max_f32 v{MX+1}, v{MX+2}, v{MX+1}")
        a(f"v_permlane16_swap_b32 v{MX}, v{MX+1}\nv_max_f32 v{MX+2}, v{MX}, v{MX+1}\nv_max_f32 v{MX+3}, v{MX}, v{MX+1}")
        a(f"v_permlane32_swap_b32 v{MX+2}, v{MX+3}\nv_max_f32 v{MX}, v{MX+2}, v{MX+3}\nv_mul_f32 v{MX}, {sNC}, v{MX}")
        for k in range(6): a(f"v_pk_fma_f32 {vr(s[2*k], 2)}, {vr(s[2*k], 2)}, {sCC}, {vr(MX, 2)} op_sel_hi:[1,1,0]")
        for r in s[:8]: a(f"v_exp_f32 v{r}, v{r}")
        for k in range(4): a(cvt(PX, S, k))
        a("s_waitcnt lgkmcnt(0)")
        a(f"v_exp_f32 v{s[8]}, v{s[8]}")
        a(f"v_mfma_f32_16x16x32_bf16 {vr(LL, 4)}, {vr(ONES, 4)}, {vr(PX, 4)}, 0")
        for d in range(4):
            if d < 3: a(f"v_exp_f32 v{s[9 + d]}, v{s[9 + d]}")
            else: a(cvt(PM, S + 8, 0)); a(cvt(PM, S + 8, 1))
            a(f"v_mfma_f32_16x16x32_bf16 {vr(OO + 4 * d, 4)}, {vr(VF + 4 * d, 4)}, {vr(PX, 4)}, 0")
        a(f"v_mfma_f32_16x16x16_bf16 {vr(LL, 4)}, {vr(ONES, 2)}, {vr(PM, 2)}, {vr(LL, 4)}")
        for d in range(4): a(f"v_mfma_f32_16x16x16_bf16 {vr(OO + 4 * d, 4)}, {vr(VM + 2 * d, 2)}, {vr(PM, 2)}, {vr(OO + 4 * d, 4)}")
        a(f"v_rcp_f32 v{MX}, v{LL}")
        for pp in range(2):
            for k in range(4): a(f"v_pk_mul_f32 {vr(OO + 8 * pp + 2 * k, 2)}, {vr(OO + 8 * pp + 2 * k, 2)}, {vr(MX, 2)} op_sel_hi:[1,0]")
            for k in range(4): a(cvt(OT + 4 * pp, OO + 8 * pp, k))
            a(f"buffer_store_dwordx4 {vr(OT + 4 * pp, 4)}, {vOUT}, {WS}, {T0} offen offset:{pp * 2048} sc1")
        a(f"s_cmp_gt_u32 {sI}, 129\ns_cbranch_scc1 L_QA_done")
        a.label(sk)
    H['head'] = head
    ldFK = f"buffer_load_dword v{FK}, {vF6}, {WS}, {fKV} offen sc1"
    def poll():
        a(f"s_lshl_b32 {T0}, {aL}, 12\ns_add_u32 {fKV}, {T0}, {bFK}\ns_add_u32 {tKV}, {aB}, 1\ns_mul_i32 {tKV}, {tKV}, {aV}")
        a(ldFK)
        a(f"s_lshl_b32 {T0}, {aJ}, 18\ns_add_u32 {dKX}, {T0}, {bKX}\ns_lshl_b32 {T0}, {sW}, 11\ns_add_u32 {dKX}, {dKX}, {T0}")
        a(f"s_lshl_b32 {T0}, {aL}, 4\ns_and_b32 {T1}, {aB}, 15\ns_add_u32 {T0}, {T0}, {T1}\ns_lshl_b32 {T0}, {T0}, 17\ns_add_u32 {dKVM}, {T0}, {bKVM}")
        a(f"s_cmp_eq_u32 {aV}, 1\ns_cselect_b32 {dKVM}, {dKVM}, {OOB}\ns_cselect_b32 {dKX}, {dKX}, {OOB}")
    H['poll'] = poll
    def mid():
        a(f"v_cmp_gt_u32 s[78:79], {tKV}, v{FK}\ns_lshl_b32 {T0}, {sW}, 10\ns_add_u32 {T0}, {T0}, {zKVM}")
        a(f"buffer_store_dwordx4 {vr(SENT, 4)}, {vL16}, {WS}, {T0} offen sc1")
        a(f"s_cmp_eq_u64 s[78:79], 0\ns_cselect_b32 {kRDY}, 1, 0\ns_cselect_b32 {zKX}, {dKX}, {OOB}")
    H['mid'] = mid
    def kvd(src):
        return [f"s_lshl_b32 {T0}, {sW}, 11\ns_add_u32 m0, {T0}, {LK}\nbuffer_load_dwordx4 {vL16}, {WS}, {src} offen sc1 lds",
                f"buffer_load_dwordx4 {vL16}, {WS}, {src} offen offset:1024 sc1 lds",
                f"s_add_u32 {T1}, {src}, {VX - KX}\ns_add_u32 m0, {T0}, {LV}\nbuffer_load_dwordx4 {vL16}, {WS}, {T1} offen sc1 lds",
                f"buffer_load_dwordx4 {vL16}, {WS}, {T1} offen offset:1024 sc1 lds"]
    H['dmas'] = lambda p: kvd(zKX)
    H['loads'] = lambda: ldm(dKVM)
    kslow = []
    def epi(p):
        for tt in range(2):
            for k in range(4): a(cvt(TM + 16 + 4 * tt, ACC + 8 * tt, k))
            a(f"ds_write_b128 {vQW}, {vr(TM + 16 + 4 * tt, 4)} offset:{p * 8192 + tt * 1024}")
        sl = a.uniq("L_qa_ks"); bk = a.uniq("L_qa_kb")
        a(f"s_cmp_eq_u32 {kRDY}, 0\ns_cbranch_scc1 {sl}"); a.label(bk); kslow.append((sl, bk))
        a("s_waitcnt lgkmcnt(0)")
    H['pub'] = lambda: None
    def ext():
        for sl, bk in extra:
            a.label(sl); a("s_mov_b32 s3, 0"); lp = a.uniq("L_qa_lp"); a.label(lp)
            for x in ldm(zKVM): a(x)
            a("s_waitcnt vmcnt(0)")
            chk(list(range(KM, KM + 24)))
            a(f"s_cbranch_vccz {bk}")
            spin_tail(a, lp, 19)
        for sl, bk in kslow:
            a.label(sl); a("s_mov_b32 s3, 0"); lp = a.uniq("L_qa_lp"); d = a.uniq("L_qa_d"); a.label(lp)
            a(f"{ldFK}\ns_waitcnt vmcnt(0)\nv_cmp_gt_u32 vcc, {tKV}, v{FK}\ns_cbranch_vccz {d}")
            spin_tail(a, lp, 20)
            a.label(d)
            for x in kvd(dKX): a(x)
            a(f"s_branch {bk}")
    H['extra'] = ext
    Gemm(a, "QA", ["T", "T"], 32, "Q4", lambda: next_job(a, 8 * MB, 65536, F_LN + 1024, 0, True), 4096, epi, 0, opt.get('xsQA', 10), 18, last=1000, diag=diag, hooks=H).emit()

def ln_finish(a, X, st_xn, T):
    a("v_add_f32 v8, v8, v9\nv_add_f32 v9, v10, v11")
    for r in (4, 8):
        a(f"v_add_f32_dpp v8, v8, v8 row_ror:{r} row_mask:0xf bank_mask:0xf\nv_add_f32_dpp v9, v9, v9 row_ror:{r} row_mask:0xf bank_mask:0xf")
    for sw in ("16", "32"):
        a(f"v_mov_b32 v10, v8\nv_mov_b32 v11, v9\nv_permlane{sw}_swap_b32 v8, v10\nv_permlane{sw}_swap_b32 v9, v11\nv_add_f32 v8, v8, v10\nv_add_f32 v9, v9, v11")
    inv = hex(f2u(1 / 1024))
    a(f"v_mul_f32 v8, {inv}, v8\nv_mul_f32 v9, {inv}, v9\nv_fma_f32 v9, -v8, v8, v9\nv_max_f32 v9, 0, v9\nv_add_f32 v9, {hex(f2u(1e-5))}, v9\nv_rsq_f32 v10, v9\nv_mul_f32 v8, v8, v10")
    for i in range(8):
        for k in range(4): a(f"v_pk_fma_f32 {vr(X + 8*i + 2*k, 2)}, {vr(X + 8*i + 2*k, 2)}, v[10:11], v[8:9] op_sel_hi:[1,0,0] neg_lo:[0,0,1] neg_hi:[0,0,1]")
        for k in range(4): a(cvt(T + 4 * (i % 4), X + 8*i, k))
        a(st_xn(i, T + 4 * (i % 4)))
def ln_stats(X, i):
    out = []
    for k in range(4):
        x = vr(X + 8*i + 2*k, 2)
        if i == 0 and k == 0: out += [f"v_pk_add_f32 v[8:9], {x}, 0 op_sel_hi:[1,0]", f"v_pk_mul_f32 v[10:11], {x}, {x}"]
        else: out += [f"v_pk_add_f32 v[8:9], v[8:9], {x}", f"v_pk_fma_f32 v[10:11], {x}, {x}, v[10:11]"]
    return out
def unpack(X, R, i):
    return [f"v_lshlrev_b32 v{X + 8*i + 2*k}, 16, v{R + 4*i + k}\nv_and_b32 v{X + 8*i + 2*k + 1}, 0xffff0000, v{R + 4*i + k}" for k in range(4)]

def ln0(a, sQ):
    X, R, T = 128, 192, 224
    srd(a, 8, P_X, 4 * MB)
    a(f"v_and_b32 v2, 3, v0\nv_lshlrev_b32 v2, 11, v2\nv_lshrrev_b32 v3, 2, v0\nv_lshl_add_u32 v2, v3, 4, v2\nv_lshlrev_b32 v3, 4, v0")
    a(f"s_lshl_b32 {T0}, {sQ}, 13\ns_add_u32 {T1}, {T0}, {XN}\ns_add_u32 {T2}, {T1}, 4096")
    for i in range(8): a(f"buffer_load_dwordx4 {vr(R + 4*i, 4)}, v2, s[8:11], {T0} offen offset:{i * 256}")
    for i in range(8):
        a(f"s_waitcnt vmcnt({7 - i})")
        for x in unpack(X, R, i) + ln_stats(X, i): a(x)
    ln_finish(a, X, lambda i, r: f"buffer_store_dwordx4 {vr(r, 4)}, v3, {WS}, {(T1, T2)[i // 4]} offen offset:{(i % 4) * 1024} sc1", T)

def role_LN(a, diag, opt):
    a.label("L_role_LN")
    X, R, P, T, SEL = 16, 80, 112, 208, 240
    vRES, vXO = "v6", "v7"
    sB, bP, bR, stR, bX, stX, bN, bF, fB = "s21", "s22", "s23", "s24", "s25", "s26", "s27", "s28", nFB
    a("v_mov_b32 v20, v0\nv_lshlrev_b32 v0, 4, v20\nv_mov_b32 v3, 0")
    poll_off(a, 0, 24)
    a(f"v_and_b32 v21, 3, v20\nv_lshlrev_b32 v21, 11, v21\nv_lshrrev_b32 v22, 2, v20\nv_lshl_add_u32 v21, v22, 4, v21")
    a(f"s_cmp_eq_u32 {sW}, 0\ns_cselect_b64 vcc, -1, 0\ns_cselect_b32 {stR}, 256, 0\ns_cselect_b32 {T0}, 0, 1024\ns_or_b32 {stR}, {stR}, {T0}\nv_cndmask_b32 {vRES}, {vL16}, v21, vcc")
    a(f"s_cmp_eq_u32 {sW}, 3\ns_cselect_b64 vcc, -1, 0\ns_cselect_b32 {stX}, 256, 0\ns_cselect_b32 {T0}, 0, 1024\ns_or_b32 {stX}, {stX}, {T0}\nv_cndmask_b32 {vXO}, {vL16}, v21, vcc")
    a(f"s_lshl_b32 {T3}, {sU}, 13\ns_lshl_b32 {T2}, {sW}, 22")
    a(f"s_cmp_eq_u32 {sW}, 0\ns_cselect_b32 s8, s{P_X}, s4\ns_cselect_b32 s9, s{P_X+1}, s5\ns_cselect_b32 s10, {4 * MB}, s6\ns_mov_b32 s11, 0x20000")
    a(f"s_add_u32 {bR}, {T2}, {XR - 4 * MB}\ns_cmp_eq_u32 {sW}, 0\ns_cselect_b32 {bR}, 0, {bR}\ns_add_u32 {bR}, {bR}, {T3}")
    a(f"s_cmp_eq_u32 {sW}, 3\ns_cselect_b32 s52, s{P_OUT}, s4\ns_cselect_b32 s53, s{P_OUT+1}, s5\ns_cselect_b32 s54, {4 * MB}, s6\ns_mov_b32 s55, 0x20000")
    a(f"s_add_u32 {bX}, {T2}, {XR}\ns_cmp_eq_u32 {sW}, 3\ns_cselect_b32 {bX}, 0, {bX}\ns_add_u32 {bX}, {bX}, {T3}")
    a(f"s_add_u32 {bN}, {T2}, {XN + 4 * MB}\ns_add_u32 {bN}, {bN}, {T3}")
    a(f"s_lshl_b32 {T0}, {sW}, 10\ns_lshl_b32 {T1}, {sU}, 7\ns_add_u32 {bF}, {T0}, {T1}\ns_add_u32 {bF}, {bF}, {F_LN}")
    a(f"s_and_b32 {T0}, {sW}, 1\ns_lshr_b32 {T1}, {sW}, 1\ns_mul_i32 {bP}, {T0}, {PD - PW}\ns_mul_i32 {fB}, {T1}, {12 * MB}\ns_add_u32 {bP}, {bP}, {fB}\ns_add_u32 {bP}, {bP}, {PW}\ns_add_u32 {bP}, {bP}, {T3}")
    a(f"s_mul_i32 {fB}, {T0}, {F_DN - F_WO}\ns_lshl_b32 {T1}, {T1}, 12\ns_add_u32 {fB}, {fB}, {T1}\ns_add_u32 {fB}, {fB}, {F_WO}")
    for k in range(6): a(f"v_mov_b32 v{SEL + k}, 0")
    a(f"s_mov_b32 {T0}, 0x3f80\ns_mov_b32 {T1}, 0x3f800000")
    for g in range(4):
        for e in range(4): a(f"v_writelane_b32 v{SEL + 2 + e // 2}, {T1 if e % 2 else T0}, {20*g + e}")
    SL = [vr(SEL + 2, 4), vr(SEL, 4)]
    for k in range(4): a(f"v_mov_b32 v{PR + k}, 0")
    a(f"buffer_store_dwordx4 {vr(PR, 4)}, {vZ}, {WS}, {bF} offen sc1")
    arrive(a)
    wait_start(a, 21); mark_start(a, diag)
    a(f"s_mov_b32 {sB}, 0")
    a.label("L_LN_loop")
    a(f"s_add_u32 {nTHR}, {sB}, 1\ns_mov_b32 s3, 0")
    a.label("L_LN_sp")
    a(f"{POLL}\ns_waitcnt vmcnt(0)\n{PCHK}\ns_cbranch_vccz L_LN_go")
    spin_tail(a, "L_LN_sp", 22)
    a.label("L_LN_go")
    a(f"s_lshl_b32 {T3}, {sB}, 16\ns_add_u32 {T0}, {T3}, {bR}\ns_mul_i32 {T1}, {sB}, {192 * 1024}\ns_add_u32 {T1}, {T1}, {bP}")
    for j in range(3):
        for hf in range(2): a(f"s_add_u32 s{34 + 2*j + hf}, {T1}, {j * 65536 + hf * 4096}")
    for i in range(8):
        a(f"buffer_load_dwordx4 {vr(R + 4*i, 4)}, {vRES}, s[8:11], {T0} offen sc1\ns_add_u32 {T0}, {T0}, {stR}")
        for j in range(3): a(f"buffer_load_dwordx4 {vr(P + 12*i + 4*j, 4)}, {vL16}, {WS}, s{34 + 2*j + i // 4} offen offset:{(i % 4) * 1024} sc1")
    a(f"s_add_u32 {T0}, {T3}, {bX}\ns_add_u32 {T1}, {T3}, {bN}\ns_add_u32 {T2}, {T1}, 4096")
    def post(i):
        return [cvt(T + 4 * (i % 4), X + 8*i, k) for k in range(4)] + \
               [f"buffer_store_dwordx4 {vr(T + 4 * (i % 4), 4)}, {vXO}, s[52:55], {T0} offen sc1\ns_add_u32 {T0}, {T0}, {stX}"] + ln_stats(X, i)
    for i in range(8):
        a(f"s_waitcnt vmcnt({28 - 4*i + max(0, i - 1)})")
        for x in unpack(X, R, i): a(x)
        fl = post(i - 1) if i else []
        for j in range(3):
            for u in range(2):
                acc = vr(X + 8*i + 4*u, 4)
                a(f"v_mfma_f32_16x16x32_bf16 {acc}, {SL[u]}, {vr(P + 12*i + 4*j, 4)}, {acc}")
                for _ in range(2):
                    if fl: a(fl.pop(0))
        for x in fl: a(x)
    for x in post(7): a(x)
    a(f"s_add_u32 {sB}, {sB}, 1\ns_cmp_eq_u32 {sW}, 3\ns_cbranch_scc1 L_LN_nx")
    ln_finish(a, X, lambda i, r: f"buffer_store_dwordx4 {vr(r, 4)}, {vL16}, {WS}, {(T1, T2)[i // 4]} offen offset:{(i % 4) * 1024} sc1", T + 16)
    for k in range(4): a(f"v_mov_b32 v{PR + k}, {sB}")
    a(f"s_waitcnt vmcnt(0)\nbuffer_store_dwordx4 {vr(PR, 4)}, {vZ}, {WS}, {bF} offen sc1")
    a.label("L_LN_nx")
    a(f"s_cmp_lt_u32 {sB}, 64\ns_cbranch_scc1 L_LN_loop")
    end_role(a, diag)
```

```python
from asmgen import *
from layout import *
import math

SPIN = 40000
WS = "s[4:7]"; DBG = "s[12:15]"
sXC, sSLOT, sW = "s16", "s17", "s18"
P_X, P_MEM0, P_WQ, P_WK, P_WV, P_WO, P_WG, P_WU, P_WD, P_OUT = 64, 66, 68, 70, 72, 74, 80, 82, 84, 86

def srd(a, d, ptr, nbytes):
    a(f"s_mov_b32 s{d}, s{ptr}\ns_mov_b32 s{d+1}, s{ptr+1}\ns_mov_b32 s{d+2}, {nbytes}\ns_mov_b32 s{d+3}, 0x20000")

def arrive(a):
    l = a.uniq("L_arr")
    a(f"s_waitcnt vmcnt(0)\ns_barrier\ns_cmp_lg_u32 {sW}, 0\ns_cbranch_scc1 {l}")
    a(f"s_mov_b64 exec, 1\nv_mov_b32 v20, 1\nv_mov_b32 v21, 4\nbuffer_atomic_add v20, v21, {DBG}, 0 offen\ns_mov_b64 exec, -1")
    a.label(l)

def wait_start(a, code):
    l = a.uniq("L_ws"); d = a.uniq("L_wsd")
    a("s_mov_b32 s3, 0\nv_mov_b32 v21, 4")
    a.label(l)
    a(f"buffer_load_dword v20, v21, {DBG}, 0 offen sc1\ns_waitcnt vmcnt(0)\nv_cmp_gt_u32 vcc, 256, v20\ns_cbranch_vccz {d}")
    spin_tail(a, l, code)
    a.label(d)

def spin_tail(a, loop, code):
    a(f"s_add_u32 s3, s3, 1\ns_cmp_lt_u32 s3, {SPIN}\ns_cbranch_scc1 {loop}\ns_mov_b32 s3, {code}\ns_branch L_abort")

def role_R(a, D, diag=False, sel=0, stamps=False, opt=None):
    opt = opt or {}
    def stamp(k):
        if stamps and stamps is not True:
            a(f"s_memrealtime s[80:81]\ns_cmp_eq_u32 s21, {stamps + (1 if k >= 13 else 0)}\ns_waitcnt lgkmcnt(0)\ns_cselect_b32 s{64+k}, s80, s{64+k}")
        elif stamps: a(f"s_memtime s[80:81]\ns_waitcnt lgkmcnt(0)\ns_sub_u32 s83, s80, s82\ns_add_u32 s{64+k}, s{64+k}, s83\ns_mov_b32 s82, s80")
    gx, i, w = sXC, sSLOT, sW
    j, h, n = "s19", "s20", "s21"
    bX1Lc, bX1Rc, bX1Lp, bX1Rp, bX2s, bX2sv, bX2r, bX2rv, bX3p, bX3c = [f"s{k}" for k in range(22, 32)]
    dX1Lc, dX1Rc, dX1Lp, dX1Rp, dX1Rq, dX2s, dX2sv, dX2r, dX2rv, dX3p, dX3c, dKX, dVX, dKVM, dFLG, dTHR = [f"s{k}" for k in range(32, 48)]
    rX2s, rX2sv, rX3p, rX1L, rX1R, rX1Rq, pFLG, pVAL = [f"s{k}" for k in range(48, 56)]
    mOWN32 = "s[56:57]"; mINJ = "s[58:59]"
    sLO, sHI, sNC, bKV = "s60", "s61", "s62", "s63"
    sCC = "s[8:9]"; mOWN16 = "s[10:11]"; sROT = ["s84", "s85", "s86", "s87"]; qFLG = dFLG; qKVM, qX1Rq, qVAL = "s88", "s89", "s2"
    t0, t1, t2, t3 = "s92", "s93", "s94", "s95"
    bFR, bFKV = "s96", "s97"
    vL16, vX1P, vKS, vQS, vVS, vOP, vKMP, vVMP, vX3C, vWO = [f"v{k}" for k in range(0, 10)]
    vROT = ["v10", "v11", "v12", "v13"]
    vNINF, vSPARE, vRED, vM0, vFO, vCHK = [f"v{k}" for k in range(14, 20)]
    OWN, RING, AQ, AK, AV, KXR, VXR, TMP, SM = 20, 36, 52, 60, 68, 76, 108, 116, 124
    KEEP = RING
    a.label("L_role_R")
    a(f"s_and_b32 {j}, {i}, 1\ns_lshr_b32 {h}, {i}, 1\ns_lshl_b32 {t0}, {gx}, 4\ns_add_u32 {h}, {h}, {t0}")
    a("v_mov_b32 v20, v0                ; lane")
    a(f"v_lshlrev_b32 {vL16}, 4, v20")
    a(f"s_lshl_b32 {t0}, {w}, 8\nv_lshl_add_u32 {vX1P}, v20, 2, {t0}")
    a(f"v_bfe_u32 v21, v20, 3, 1\nv_cmp_eq_u32 s[92:93], {j}, v21      ; own16")
    a(f"v_lshrrev_b32 v21, 5, v20\nv_cmp_eq_u32 {mOWN32}, {j}, v21")
    a(f"v_mov_b32 v22, 0x40000000")
    a(f"v_cndmask_b32 {vKS}, {vL16}, v22, s[92:93]")
    a(f"v_xor_b32 v23, 128, {vL16}\nv_cndmask_b32 {vQS}, v23, v22, s[92:93]")
    a(f"v_and_b32 v24, 0x1f0, {vL16}\nv_cndmask_b32 {vVS}, v24, v22, {mOWN32}\nv_cndmask_b32 {vVMP}, v22, v24, {mOWN32}")
    a(f"v_lshrrev_b32 v25, 4, v20\nv_lshlrev_b32 v25, 7, v25\nv_and_b32 v26, 7, v20\nv_lshl_add_u32 v25, v26, 4, v25     ; g*128+(n&7)*16")
    a(f"v_cndmask_b32 {vOP}, v25, v22, s[92:93]\nv_cndmask_b32 {vKMP}, v22, v25, s[92:93]")
    a(f"v_bfe_u32 v21, v20, 3, 1\nv_lshl_add_u32 {vX3C}, v21, 9, v25")
    a(f"s_lshl_b32 {t2}, {w}, 15\ns_add_u32 {t2}, {t2}, 0x8000\nv_add_u32 {vWO}, {t2}, {vL16}")
    for q in range(4):
        a(f"s_add_u32 {t2}, {w}, {q}\ns_and_b32 {t2}, {t2}, 3\ns_lshl_b32 {sROT[q]}, {t2}, 11\ns_lshl_b32 {t2}, {t2}, 13\nv_add_u32 {vROT[q]}, {t2}, {vL16}")
    a(f"v_mov_b32 {vNINF}, 0xff800000\nv_and_b32 v21, 15, v20\nv_lshlrev_b32 v21, 7, v21\nv_bfe_u32 v22, v20, 4, 1\nv_lshl_add_u32 {vSPARE}, v22, 25, v21")
    a(f"v_lshrrev_b32 v21, 2, v20\nv_lshlrev_b32 v21, 4, v21\nv_bfe_u32 v22, v20, 1, 1\nv_lshl_add_u32 v21, v22, 10, v21\nv_and_b32 v22, 1, v20\nv_lshl_add_u32 v21, v22, 3, v21")
    a(f"s_lshl_b32 {t2}, {w}, 8\nv_add_u32 {vRED}, {t2}, v21")
    a(f"v_min_u32 v21, 5, v20\nv_lshlrev_b32 {vFO}, 2, v21")
    a(f"s_mov_b32 {sLO}, 0x00003f80\ns_mov_b32 {sHI}, 0x3f800000\ns_mov_b32 {sNC}, {hex(f2u(-(128 ** -0.5) * math.log2(math.e)))}")
    srd(a, 8, P_MEM0, 16384)
    a(f"v_bfe_u32 v21, v20, 2, 3\nv_lshlrev_b32 v21, 11, v21\nv_and_b32 v22, 3, v20\nv_lshl_add_u32 v21, v22, 2, v21")
    a(f"s_lshl_b32 {t2}, {i}, 6\ns_lshl_b32 {t3}, {w}, 4\ns_add_u32 {t2}, {t2}, {t3}\ns_cmp_eq_u32 {gx}, 0\ns_cselect_b32 {t2}, {t2}, 0x100000")
    a(f"buffer_load_dword {vM0}, v21, s[8:11], {t2} offen")
    def phys(dst, src):
        a(f"s_lshr_b32 {t3}, {src}, 13\ns_lshl_b32 {t3}, {t3}, 14\ns_and_b32 {dst}, {src}, 8191\ns_add_u32 {dst}, {dst}, {t3}")
    a(f"s_lshl_b32 {t0}, {j}, 14\ns_lshl_b32 {t1}, {w}, 12\ns_add_u32 {t0}, {t0}, {t1}      ; (16j+4w)K")
    a(f"s_lshl_b32 {t1}, {gx}, 15\ns_add_u32 {bX1Lc}, {t0}, {t1}\ns_add_u32 {bX1Lc}, {bX1Lc}, {X1L}")
    a(f"s_xor_b32 {t2}, {t1}, 0x8000\ns_add_u32 {t2}, {t2}, {t0}")
    phys(bX1Rc, t2); a(f"s_add_u32 {bX1Rc}, {bX1Rc}, {X1R + sel * 8192}")
    a(f"s_lshl_b32 {t0}, {i}, 10\ns_add_u32 {t2}, {t0}, {t1}\ns_add_u32 {bX1Lp}, {t2}, {X1L}")
    phys(bX1Rp, t2); a(f"s_add_u32 {bX1Rp}, {bX1Rp}, {X1R + sel * 8192}")
    a(f"s_lshl_b32 {t0}, {h}, 1\ns_add_u32 {t0}, {t0}, {j}\ns_lshl_b32 {t0}, {t0}, 13\ns_add_u32 {bX2r}, {t0}, {X2}")
    a(f"s_lshl_b32 {t1}, {w}, 9\ns_add_u32 {t1}, {t1}, 4096\ns_add_u32 {bX2rv}, {bX2r}, {t1}")
    a(f"s_xor_b32 {t0}, {bX2r}, 0x2000\ns_add_u32 {bX2sv}, {t0}, {t1}\ns_lshl_b32 {t1}, {w}, 10\ns_add_u32 {bX2s}, {t0}, {t1}\ns_add_u32 {bX2r}, {bX2r}, {t1}")
    a(f"s_lshl_b32 {t0}, {h}, 12\ns_add_u32 {t0}, {t0}, {t1}\ns_lshl_b32 {t1}, {j}, 9\ns_add_u32 {t0}, {t0}, {t1}\ns_add_u32 {bX3p}, {t0}, {X3}")
    a(f"s_lshl_b32 {t0}, {gx}, 16\ns_lshl_b32 {t1}, {w}, 14\ns_add_u32 {t0}, {t0}, {t1}\ns_add_u32 {bX3c}, {t0}, {X3}")
    a(f"s_lshl_b32 {t0}, {j}, 11\ns_add_u32 {bKV}, {t0}, {h}         ; j*2048+h")
    a(f"s_lshl_b32 {t0}, {j}, 9\ns_lshl_b32 {t1}, {h}, 4\ns_add_u32 {t0}, {t0}, {t1}\ns_lshl_b32 {bFKV}, {t0}, 3\ns_add_u32 {bFKV}, {bFKV}, {F_KV}")
    a(f"s_lshl_b32 {t0}, {j}, 9\ns_add_u32 {t0}, {t0}, {h}\ns_lshl_b32 {t0}, {t0}, 12\ns_lshl_b32 {t1}, {w}, 9\ns_add_u32 {t0}, {t0}, {t1}\ns_add_u32 {bFR}, {t0}, {KVM}")
    a("v_mov_b32 v24, -1\nv_mov_b32 v25, -1\nv_mov_b32 v26, -1\nv_mov_b32 v27, -1\nv_mov_b32 v28, 0\nv_mov_b32 v29, 0")
    for sl in range(4):
        a(f"s_add_u32 {t0}, {bX1Lp}, {sl << 16}\nbuffer_store_dword v24, {vX1P}, {WS}, {t0} offen")
        a(f"s_add_u32 {t0}, {bX1Rp}, {sl << 17}\nbuffer_store_dword v24, {vX1P}, {WS}, {t0} offen sc1")
        a(f"s_xor_b32 {t0}, {t0}, 8192\nbuffer_store_dword v24, {vX1P}, {WS}, {t0} offen sc1")
        a(f"s_add_u32 {t0}, {bX2s}, {sl << 19}\nbuffer_store_dwordx4 v[24:27], {vL16}, {WS}, {t0} offen")
        a(f"s_add_u32 {t0}, {bX2sv}, {sl << 19}\nbuffer_store_dwordx4 v[24:27], {vVS}, {WS}, {t0} offen")
        a(f"s_add_u32 {t0}, {bX3p}, {sl << 17}\nbuffer_store_dwordx4 v[24:27], {vOP}, {WS}, {t0} offen")
    a("v_mov_b32 v30, v20")
    arrive(a)
    srd(a, 8, P_WQ, 8 * MB); srd(a, 32, P_WK, 8 * MB); srd(a, 36, P_WV, 8 * MB); srd(a, 40, P_WO, 8 * MB)
    S = ["s[8:11]", "s[32:35]", "s[36:39]", "s[40:43]"]
    vDA, vDO, vTA, vTV, vTO = "v31", "v32", "v33", "v34", "v35"
    a(f"v_lshrrev_b32 v21, 2, v30\nv_and_b32 v22, 3, v30\nv_lshlrev_b32 v23, 4, v22\nv_lshl_add_u32 {vDA}, v21, 13, v23\nv_lshl_add_u32 {vDO}, v21, 11, v23")
    a(f"s_lshl_b32 s44, {w}, 15\ns_add_u32 s44, s44, 0x8000")
    a(f"v_lshrrev_b32 v24, 4, v30\nv_bfe_u32 v25, v30, 2, 2\nv_lshlrev_b32 v25, 6, v25\nv_add_u32 v25, s44, v25")
    a(f"v_lshl_add_u32 v26, v24, 9, v25\nv_add_u32 {vTA}, v26, v23\nv_lshl_add_u32 {vTV}, v22, 3, v26")
    a(f"v_lshl_add_u32 v26, v24, 8, v25\nv_add_u32 {vTO}, v26, v23")
    a(f"s_lshl_b32 s45, {j}, 22\ns_lshl_b32 {t0}, {h}, 8\ns_add_u32 s45, s45, {t0}\ns_lshl_b32 {t0}, {w}, 6\ns_add_u32 s45, s45, {t0}")
    a(f"s_lshl_b32 s46, {gx}, 22\ns_lshl_b32 {t0}, {w}, 20\ns_add_u32 s46, s46, {t0}\ns_lshl_b32 {t0}, {i}, 6\ns_add_u32 s46, s46, {t0}")
    a(f"s_lshl_b32 s47, {w}, 2")
    def dma(B):
        m, p = divmod(B, 16)
        if m < 3:
            a(f"s_add_u32 {t0}, s47, {p}\ns_and_b32 {t0}, {t0}, 15\ns_lshl_b32 {t0}, {t0}, 18\ns_add_u32 {t0}, {t0}, s45\ns_add_u32 {t1}, {t0}, {16 * 8192}")
        else:
            a(f"s_add_u32 {t0}, s46, {p * 32 * 2048}\ns_add_u32 {t1}, {t0}, {16 * 2048}")
        v = vDA if m < 3 else vDO
        a(f"s_add_u32 m0, s44, {p * 2048}\nbuffer_load_dwordx4 {v}, {S[m]}, {t0} offen lds")
        a(f"s_add_u32 m0, s44, {p * 2048 + 1024}\nbuffer_load_dwordx4 {v}, {S[m]}, {t1} offen lds")
    def W(m, p, t):
        r = ((m * 16 + p) * 2 + t) * 4
        return ("a", r) if r < 256 else ("v", r - 128)
    for B in range(16): dma(B)
    for B in range(64):
        m, p = divmod(B, 16)
        a(f"s_waitcnt vmcnt({min(30, 2 * (63 - B))})")
        for t in range(2):
            for u in range(2):
                if m < 3:
                    f, r = W(m, p, t)
                    a(f"ds_read_b64_tr_b16 {vr(r + 2 * u, 2, f)}, {vTA if m < 2 else vTV} offset:{p * 2048 + u * 256 + t * (8 if m < 2 else 32)}")
                else:
                    a(f"ds_read_b64_tr_b16 {vr(40 + 4 * t + 2 * u, 2)}, {vTO} offset:{p * 2048 + u * 1024 + t * 8}")
        a("s_waitcnt lgkmcnt(0)")
        if m < 3: dma(B + 16)
        else: a(f"ds_write_b128 {vWO}, v[40:43] offset:{p * 2048}\nds_write_b128 {vWO}, v[44:47] offset:{p * 2048 + 1024}\ns_waitcnt lgkmcnt(0)")
    Wr = lambda m, p, t: vr(W(m, p, t)[1], 4, W(m, p, t)[0])
    wait_start(a, 1)
    if diag: a("s_memrealtime s[98:99]\ns_waitcnt lgkmcnt(0)\ns_mov_b32 s100, 0\ns_mov_b32 s101, 0")
    if stamps:
        for k in range(16): a(f"s_mov_b32 s{64+k}, 0")
        a("s_memtime s[80:81]\ns_waitcnt lgkmcnt(0)\ns_mov_b32 s82, s80")
    ldF = f"buffer_load_dword {vSPARE}, {vFO}, {WS}, {bFKV} offen sc1"
    a(ldF + "\ns_waitcnt vmcnt(0)")
    a(f"v_min_u32 {vM0}, -2, {vM0}\ns_mov_b32 {n}, 0\ns_mov_b32 {qKVM}, {OOB}")
    a(f"s_mov_b32 s8, {hex(f2u(128 ** -0.5 * math.log2(math.e)))}\ns_mov_b32 s9, s8\ns_cmp_eq_u32 {j}, 0\ns_cselect_b32 s10, 0x00ff00ff, 0\ns_cselect_b32 s11, 0, 0xff00ff00\ns_or_b32 s10, s10, s11\ns_mov_b32 s11, s10")
    a(f"v_mov_b32 v40, 0\nv_mov_b32 v41, 0")
    for g in range(4):
        for e in range(4): a(f"v_writelane_b32 v{40 + e // 2}, {sHI if e % 2 else sLO}, {20*g + e}")
    a(f"ds_write_b64 {vROT[0]}, v[40:41] offset:5120\ns_lshl_b32 {t0}, {w}, 13\ns_add_u32 m0, {t0}, 6144\ns_waitcnt lgkmcnt(0)")
    a(f"buffer_store_dword {vM0}, {vX1P}, {WS}, {bX1Lp} offen\nbuffer_store_dword {vM0}, {vX1P}, {WS}, {bX1Rp} offen sc1")
    def chk(regs, first):
        k = 0
        if first: a(f"v_max3_u32 {vCHK}, v{regs[0]}, v{regs[1]}, v{regs[2]}\nv_max_u32 {vCHK}, {vCHK}, v{regs[3]}"); k = 4
        while k < len(regs): a(f"v_max3_u32 {vCHK}, {vCHK}, v{regs[k]}, v{regs[k+1]}"); k += 2
    rng = lambda b, c: list(range(b, b + c))
    retries = []
    def cnt(bit):
        return f"s_add_u32 s{100 + bit // 2}, s{100 + bit // 2}, {1 << (16 * (bit % 2))}\n" if diag else ""
    def branch_retry(loads, back, code, bit):
        l = a.uniq("L_rt")
        a(f"v_cmp_eq_u32 vcc, -1, {vCHK}\ns_cbranch_vccnz {l}")
        retries.append((l, cnt(bit) + loads, back, code))
    a.label("L_R_step")
    a(f"s_and_b32 {t0}, {n}, 3\ns_lshl_b32 {t1}, {t0}, 16\ns_add_u32 {dX1Lc}, {bX1Lc}, {t1}\ns_xor_b32 {t1}, {t1}, 0x20000\ns_add_u32 {rX1L}, {bX1Lp}, {t1}")
    a(f"s_lshl_b32 {t1}, {t0}, 17\ns_add_u32 {dX1Rc}, {bX1Rc}, {t1}\ns_add_u32 {dX3p}, {bX3p}, {t1}\ns_add_u32 {dX3c}, {bX3c}, {t1}")
    a(f"s_xor_b32 {t1}, {t1}, 0x40000\ns_add_u32 {rX1R}, {bX1Rp}, {t1}\ns_add_u32 {rX3p}, {bX3p}, {t1}")
    a(f"s_lshl_b32 {t1}, {t0}, 19\ns_add_u32 {dX2s}, {bX2s}, {t1}\ns_add_u32 {dX2sv}, {bX2sv}, {t1}\ns_add_u32 {dX2r}, {bX2r}, {t1}\ns_add_u32 {dX2rv}, {bX2rv}, {t1}")
    a(f"s_xor_b32 {t1}, {t1}, 0x100000\ns_add_u32 {rX2s}, {bX2s}, {t1}\ns_add_u32 {rX2sv}, {bX2sv}, {t1}")
    a(f"s_add_u32 {t0}, {n}, 1\ns_and_b32 {t0}, {t0}, 3\ns_lshl_b32 {t1}, {t0}, 16\ns_add_u32 {dX1Lp}, {bX1Lp}, {t1}\ns_lshl_b32 {t1}, {t0}, 17\ns_add_u32 {dX1Rp}, {bX1Rp}, {t1}")
    a("s_mov_b32 s3, 0")
    a(f"s_mul_i32 {t0}, {j}, {D}\ns_sub_u32 {t0}, {n}, {t0}\ns_add_u32 {pVAL}, {t0}, 1\ns_lshl_b32 {t1}, {t0}, 5\ns_add_u32 {t1}, {t1}, {bKV}")
    a(f"s_lshl_b32 {t2}, {t1}, 13\ns_add_u32 {dKX}, {t2}, {KX}\ns_add_u32 {t2}, {t2}, {sROT[0]}\ns_add_u32 {dVX}, {t2}, {VX}")
    a(f"s_and_b32 {t2}, {t0}, 15\ns_lshl_b32 {t2}, {t2}, 17\ns_add_u32 {dKVM}, {t2}, {bFR}")
    a(f"s_cmp_lt_u32 {t0}, 64\ns_cselect_b32 {dKX}, {dKX}, {OOB}\ns_cselect_b32 {dVX}, {dVX}, {OOB}\ns_cselect_b32 {dKVM}, {dKVM}, {OOB}\ns_cselect_b32 {dTHR}, {pVAL}, 0")
    a(f"s_cmp_eq_u32 {n}, {D-1}\ns_cselect_b32 s59, -1, 0\ns_mov_b32 s58, 0")
    if opt.get('nokvm'): a(f"s_mov_b32 {dKVM}, {OOB}")
    if opt.get('fixkx'): a(f"s_lshl_b32 {t2}, {bKV}, 13\ns_add_u32 {dKX}, {t2}, {KX}\ns_add_u32 {t2}, {t2}, {sROT[0]}\ns_add_u32 {dVX}, {t2}, {VX}")
    ldL = "\n".join(f"buffer_load_dwordx4 {vr(OWN + 4*p, 4)}, {vL16}, {WS}, {dX1Lc} offen offset:{p*1024} sc1" for p in range(4))
    ldR = "\n".join(f"buffer_load_dwordx4 {vr(RING + 4*p, 4)}, {vL16}, {WS}, {dX1Rc} offen offset:{p*1024} sc1" for p in range(4))
    def cvt(T, A, k): return f"v_cvt_pk_bf16_f32 v{T + k}, v{A + 2*k}, v{A + 2*k + 1}"
    def chkl(regs, first):
        out = []; k = 0
        if first: out += [f"v_max3_u32 {vCHK}, v{regs[0]}, v{regs[1]}, v{regs[2]}", f"v_max_u32 {vCHK}, {vCHK}, v{regs[3]}"]; k = 4
        while k < len(regs): out.append(f"v_max3_u32 {vCHK}, {vCHK}, v{regs[k]}, v{regs[k+1]}"); k += 2
        return out
    CMP = f"v_cmp_eq_u32 vcc, -1, {vCHK}"
    def br(loads, back, code, bit):
        l = a.uniq("L_rt"); a(f"s_cbranch_vccnz {l}"); retries.append((l, cnt(bit) + loads, back, code))
    SEL = [vr(VXR + 2, 4), vr(VXR, 4)]
    ACC = KXR
    a(f"ds_read_b64 {vr(VXR + 2, 2)}, {vROT[0]} offset:5120")
    a(f"v_mov_b32 v{VXR}, 0\nv_mov_b32 v{VXR+1}, 0\nv_mov_b32 v{VXR+4}, 0\nv_mov_b32 v{VXR+5}, 0")
    a.label("L_R_kvf")
    a(f"v_cmp_gt_u32 vcc, {dTHR}, {vSPARE}\ns_add_u32 {t0}, {dKX}, {sROT[0]}"); br(ldF, "L_R_kvf", 3, 0)
    a(f"s_waitcnt vmcnt({opt.get('wL', 1)})")
    for _ in range(opt.get('dL', 0)): a("s_nop 15")
    stamp(0)
    a(ldL)
    early = opt.get('earlyR', 0)
    a("s_waitcnt lgkmcnt(0)")
    if early:
        a("s_waitcnt vmcnt(4)")
        for _ in range(opt.get('dR', 0)): a("s_nop 15")
        a(ldR)
    a.label("L_R_x1l")
    for p in range(4):
        a(f"s_waitcnt vmcnt({3 - p + (4 if early else 0)})")
        c = chkl(rng(OWN + 4*p, 4), p == 0)
        if p == 3: a(c[0]); a(c[1]); a(CMP); c = ["", ""]
        for u in range(2):
            a(f"v_mfma_f32_16x16x32_bf16 {vr(ACC + 8*p + 4*u, 4)}, {SEL[u]}, {vr(OWN + 4*p, 4)}, 0")
            if c[u]: a(c[u])
    br(ldL, "L_R_x1l", 2, 0)
    stamp(1)
    if not early:
        for _ in range(opt.get('dR', 0)): a("s_nop 15")
        a(ldR)
    stamp(2)
    a.label("L_R_x1r")
    TT = [AQ, AK, AV, TMP]
    wrs = lambda p: [cvt(OWN + 4*p, TT[p], k) for k in range(4)] + [f"ds_write_b128 {vROT[0]}, {vr(OWN + 4*p, 4)} offset:{p*1024}"]
    for p in range(4):
        a(f"s_waitcnt vmcnt({3 - p})")
        for u in range(2):
            a(f"v_mfma_f32_16x16x32_bf16 {vr(TT[p] + 4*u, 4)}, {SEL[u]}, {vr(RING + 4*p, 4)}, {vr(ACC + 8*p + 4*u, 4)}")
        for x in chkl(rng(RING + 4*p, 4), p == 0): a(x)
        if p == 3: a(CMP)
        if p > 0:
            for x in wrs(p - 1): a(x)
    br(ldR, "L_R_x1r", 4, 1)
    for x in wrs(3): a(x)
    stamp(3)
    fr = lambda p: vr(OWN + 4*p, 4) if p < 4 else vr(RING + 4*(p % 4), 4)
    rd = lambda p: f"ds_read_b128 {vr(RING + 4*(p % 4), 4)}, {vROT[p // 4]} offset:{(p % 4)*1024}"
    def mm(m, p, t, first):
        acc = vr((AQ, AK, AV)[m] + 4*t, 4)
        A, Bo = (Wr(m, p, t), fr(p)) if m < 2 else (fr(p), Wr(m, p, t))
        a(f"v_mfma_f32_16x16x32_bf16 {acc}, {A}, {Bo}, {'0' if first else acc}")
    KMR = KXR + 4
    kvl = [f"buffer_load_dwordx4 {vL16}, {WS}, {t0} offen sc1 lds", f"buffer_load_dwordx4 {vL16}, {WS}, {t0} offen offset:1024 sc1 lds",
           f"buffer_store_dwordx4 {vr(SM, 4)}, {vVMP}, {WS}, {qKVM} offen offset:2048 sc1",
           f"buffer_store_dwordx4 {vr(KMR, 4)}, {vKMP}, {WS}, {qKVM} offen sc1"]
    kvl += [f"buffer_load_dwordx4 {vr(VXR + 4*k, 4)}, {vL16}, {WS}, {dVX} offen offset:{k*1024} sc1" for k in range(2)]
    kvl += [ldF, f"buffer_store_dword v{KXR+2}, {vX1P}, {WS}, {rX1R} offen sc1", f"buffer_store_dword v{KXR+2}, {vX1P}, {WS}, {rX1L} offen"]
    stF = f"buffer_store_dword v{KXR}, v{KXR+1}, {WS}, {qFLG} offen sc1"
    kxr = [f"ds_read_b128 {vr(KXR + 4*k, 4)}, {vROT[k // 2]} offset:{6144 + (k % 2)*1024}" for k in range(8)]
    a(f"ds_read_b128 {vr(KMR, 4)}, {vROT[0]} offset:4096")
    mm(0, 0, 0, True); mm(0, 0, 1, True); mm(1, 0, 0, True); mm(1, 0, 1, True)
    a("s_waitcnt lgkmcnt(0)\ns_barrier")
    stamp(4)
    for p in range(4, 8): a(rd(p))
    kpos = opt.get('kpos', 12)
    for p in range(1, 14):
        if p >= 4: a(f"s_waitcnt lgkmcnt({min(3, 15 - p) + 2*max(0, p - max(kpos, 12))})")
        if p == kpos: a(f"s_waitcnt vmcnt(7)\ns_barrier")
        mm(0, p, 0, False)
        if p == 2: a(f"v_mov_b32 v{KXR+2}, -1")
        mm(0, p, 1, False)
        if kvl: a(kvl.pop(0))
        mm(1, p, 0, False)
        if kvl and opt.get('two'): a(kvl.pop(0))
        if p >= kpos and kxr: a(kxr.pop(0))
        mm(1, p, 1, False)
        if p >= kpos and kxr: a(kxr.pop(0))
        if 4 <= p < 12: a(rd(p + 4))
    a(f"s_waitcnt lgkmcnt({2*(14 - max(kpos, 12))})")
    for m in range(2):
        for p in (14, 15):
            for t in range(2):
                mm(m, p, t, False)
                if kxr and (t == 0 or kpos > 12): a(kxr.pop(0))
    assert not kxr
    mm(2, 12, 0, True)
    for k in range(4): a(cvt(TMP, AQ, k))
    a(f"buffer_store_dwordx4 {vr(TMP, 4)}, {vQS}, {WS}, {dX2s} offen")
    mm(2, 12, 1, True)
    for k in range(4): a(cvt(TMP + 4, AK, k))
    a(f"buffer_store_dwordx4 {vr(TMP + 4, 4)}, {vKS}, {WS}, {dX2s} offen")
    stamp(5)
    fill = [f"v_mov_b32_dpp v{AQ + k}, v{AQ + k} row_ror:8 row_mask:0xf bank_mask:0xf" for k in range(8)]
    fill += [f"v_cndmask_b32 v{AK + k}, v{AQ + k}, v{AK + k}, {mOWN16}" for k in range(8)]
    fill += [f"v_cndmask_b32 v{SM + k}, {vNINF}, 0, {mOWN32}" for k in range(4)]
    RQ = AQ
    ldQ = f"buffer_load_dwordx4 {vr(RQ, 4)}, {vL16}, {WS}, {dX2r} offen sc1"
    a(rd(4))
    order = [13, 14, 15, 0, 1, 2, 3, 4, 5, 6, 7, 8, 9, 10, 11]
    qpos = opt.get('qpos', 8)
    for x, p in enumerate(order):
        if p == 4: a("s_waitcnt lgkmcnt(0)")
        if p >= 8 and p < 12: a(f"s_waitcnt lgkmcnt({11 - p})")
        mm(2, p, 0, False)
        if fill: a(fill.pop(0))
        if x == qpos: assert len(fill) <= 4; a(ldQ)
        mm(2, p, 1, False)
        if fill: a(fill.pop(0))
        if p >= 13: a(rd(p - 8))
        elif 4 <= p < 8: a(rd(p + 4))
    assert not fill
    stamp(6)
    a("s_waitcnt vmcnt(0)")
    a.label("L_R_x2")
    chk(rng(RQ, 4), True)
    a(CMP)
    FT = RING
    for k in range(4):
        a(f"v_dot2_f32_bf16 v{FT + 2*k}, v{RQ + k}, {sLO}, v{AK + 2*k}\nv_dot2_f32_bf16 v{FT + 2*k + 1}, v{RQ + k}, {sHI}, v{AK + 2*k + 1}")
    br(ldQ, "L_R_x2", 5, 2)
    for k in range(4): a(cvt(OWN, FT, k))
    a(f"ds_write_b128 {vROT[0]}, {vr(OWN, 4)} offset:4096")
    SX = [TMP, TMP + 4]
    def smm(p, fl=()):
        F = vr(OWN + 4*p, 4); fl = list(fl)
        for tt in range(3):
            if tt < 2: a(f"v_mfma_f32_16x16x32_bf16 {vr(SX[tt], 4)}, {vr(KXR + 8*p + 4*tt, 4)}, {F}, {'0' if p == 0 else vr(SX[tt], 4)}")
            else: a(f"v_mfma_f32_16x16x32_bf16 {vr(SM, 4)}, {F}, {F}, {vr(SM, 4)}")
            for _ in range(2):
                if fl: a(fl.pop(0))
        for x in fl: a(x)
    VS = RING + 8
    for k in range(4): a(cvt(VS, AV, k))
    a(f"buffer_store_dwordx4 {vr(VS, 4)}, {vVS}, {WS}, {dX2sv} offen")
    a("s_waitcnt lgkmcnt(0)\ns_barrier")
    stamp(7)
    for p in range(1, 4): a(f"ds_read_b128 {vr(OWN + 4*p, 4)}, {vROT[p]} offset:4096")
    ONES, PX, PM, OO, LL, MX = KEEP, KEEP + 4, KEEP + 12, KEEP + 16, KEEP + 24, KEEP + 28
    VA = KXR
    zz = [f"v_cndmask_b32 v{AV + k}, 0, v{AV + k}, {mOWN32}" for k in range(8)] + [f"v_mov_b32 v{ONES + k}, 0x3f803f80" for k in range(4)]
    zz += [f"v_cvt_pk_bf16_f32 v{VA + 4*(k // 2) + k % 2}, v{AV + 2*k}, v{AV + 2*k + 1}" for k in range(4)]
    ldV = f"buffer_load_dwordx2 {vr(VA + 2, 2)}, {vVMP}, {WS}, {dX2rv} offen sc1\nbuffer_load_dwordx2 {vr(VA + 6, 2)}, {vVMP}, {WS}, {dX2rv} offen offset:8 sc1"
    smm(0, zz[:6])
    a("s_waitcnt lgkmcnt(2)"); smm(1, zz[6:12])
    a("s_waitcnt lgkmcnt(1)"); smm(2, zz[12:])
    a("s_waitcnt lgkmcnt(0)"); smm(3)
    a(ldV)
    sG = [dX3c, t0, t1, t2]
    a(f"s_add_u32 {t0}, {dX3c}, 4096\ns_add_u32 {t1}, {dX3c}, 8192\ns_add_u32 {t2}, {dX3c}, 12288")
    s = rng(SX[0], 8) + rng(SM, 4)
    a(f"v_max3_f32 v{MX}, v{s[0]}, v{s[1]}, v{s[2]}\nv_max3_f32 v{MX+1}, v{s[3]}, v{s[4]}, v{s[5]}\nv_max3_f32 v{MX}, v{MX}, v{s[6]}, v{s[7]}")
    a(f"v_max3_f32 v{MX+1}, v{MX+1}, v{s[8]}, v{s[9]}\nv_max3_f32 v{MX+2}, v{MX}, v{s[10]}, v{s[11]}\nv_max_f32 v{MX}, v{MX+2}, v{MX+1}\nv_max_f32 v{MX+1}, v{MX+2}, v{MX+1}")
    a(f"v_permlane16_swap_b32 v{MX}, v{MX+1}\nv_max_f32 v{MX+2}, v{MX}, v{MX+1}\nv_max_f32 v{MX+3}, v{MX}, v{MX+1}")
    a(f"v_permlane32_swap_b32 v{MX+2}, v{MX+3}\nv_max_f32 v{MX}, v{MX+2}, v{MX+3}\nv_mul_f32 v{MX}, {sNC}, v{MX}")
    for k in range(6): a(f"v_pk_fma_f32 {vr(s[2*k], 2)}, {vr(s[2*k], 2)}, {sCC}, {vr(MX, 2)} op_sel_hi:[1,1,0]")
    for r in s[:8]: a(f"v_exp_f32 v{r}, v{r}")
    for k in range(4): a(f"v_cvt_pk_bf16_f32 v{PX + k}, v{s[2*k]}, v{s[2*k+1]}")
    for r in s[8:10]: a(f"v_exp_f32 v{r}, v{r}")
    a(f"v_mfma_f32_16x16x32_bf16 {vr(LL, 4)}, {vr(ONES, 4)}, {vr(PX, 4)}, 0")
    a(f"v_exp_f32 v{s[10]}, v{s[10]}")
    a(f"v_mfma_f32_16x16x32_bf16 {vr(OO, 4)}, {vr(VXR, 4)}, {vr(PX, 4)}, 0")
    a(f"v_exp_f32 v{s[11]}, v{s[11]}")
    a(f"v_mfma_f32_16x16x32_bf16 {vr(OO + 4, 4)}, {vr(VXR + 4, 4)}, {vr(PX, 4)}, 0")
    stamp(8)
    a("s_waitcnt vmcnt(0)")
    a.label("L_R_x2v")
    chk([VA + 2, VA + 3, VA + 6, VA + 7], True)
    a(CMP)
    for k in range(4): a(f"v_cvt_pk_bf16_f32 v{PM + k}, v{s[8 + 2*(k % 2)]}, v{s[9 + 2*(k % 2)]}")
    br(ldV, "L_R_x2v", 6, 2)
    a(f"v_mfma_f32_16x16x16_bf16 {vr(LL, 4)}, {vr(ONES, 2)}, {vr(PM, 2)}, {vr(LL, 4)}")
    for t in range(2): a(f"v_mfma_f32_16x16x32_bf16 {vr(OO + 4*t, 4)}, {vr(VA + 4*t, 4)}, {vr(PM, 4)}, {vr(OO + 4*t, 4)}")
    for k in range(4): a(f"v_mov_b32 v{TMP + k}, -1")
    a(f"v_rcp_f32 v{MX}, v{LL}")
    for k in range(4): a(f"v_pk_mul_f32 {vr(OO + 2*k, 2)}, {vr(OO + 2*k, 2)}, {vr(MX, 2)} op_sel_hi:[1,0]")
    for k in range(4): a(cvt(PX, OO, k))
    a(f"buffer_store_dwordx4 {vr(PX, 4)}, {vOP}, {WS}, {dX3p} offen")
    stamp(9)
    a(f"buffer_store_dwordx4 {vr(TMP, 4)}, {vL16}, {WS}, {rX2s} offen\nbuffer_store_dwordx4 {vr(TMP, 4)}, {vVS}, {WS}, {rX2sv} offen\nbuffer_store_dwordx4 {vr(TMP, 4)}, {vOP}, {WS}, {rX3p} offen")
    for k in range(4):
        r = VA + 4*(k // 2) + 2 + k % 2
        a(f"v_dot2c_f32_bf16 v{AV + 2*k}, {sLO}, v{r}\nv_dot2c_f32_bf16 v{AV + 2*k + 1}, {sHI}, v{r}")
    for k in range(4): a(cvt(SM, AV, k))
    a(f"s_cmp_eq_u32 {n}, {63 + D}\ns_cbranch_scc1 L_R_done")
    WR = [OWN, OWN + 4, OWN + 8, OWN + 12, VXR, VXR + 4, AV, AV + 4]
    wrd = lambda f: f"ds_read_b128 {vr(WR[f % 8], 4)}, {vWO} offset:{f*1024}"
    OF = lambda k: (KXR + 4*(k % 12)) if k % 12 < 8 else (RING + 4*(k % 12 - 8))
    for f in range(8): a(wrd(f))
    ld1 = lambda k: f"buffer_load_dwordx4 {vr(OF(k), 4)}, {vX3C}, {WS}, {sG[k // 4]} offen offset:{(k % 4)*1024} sc1"
    a(f"s_waitcnt vmcnt({opt.get('w3', 3)})")
    for _ in range(opt.get('d3', 0)): a("s_nop 15")
    stamp(10)
    AHEAD = opt.get('ahead', 6)
    issued = AHEAD
    for k in range(AHEAD): a(ld1(k))
    AC = [AQ, AK]
    def m3(k, t):
        G = k // 4; f = 2*k + t
        D_ = vr(AC[G % 2] + 4*t, 4)
        C_ = '0' if k == 0 else (vr(AC[(G - 1) % 2] + 4*t, 4) if k % 4 == 0 else D_)
        return f"v_mfma_f32_16x16x32_bf16 {D_}, {vr(WR[f % 8], 4)}, {vr(OF(k), 4)}, {C_}"
    slow = []
    for k in range(16):
        G = k // 4
        a(f"s_waitcnt vmcnt({issued - k - 1}) lgkmcnt({min(6, 30 - 2*k)})")
        c = chkl(rng(OF(k), 4), k % 4 == 0)
        if k % 4 == 3: a(c[0]); a(c[1]); a(CMP); c = ["", ""]
        for t in range(2):
            a(m3(k, t))
            if c[t]: a(c[t])
            if 2*k + t + 8 < 32: a(wrd(2*k + t + 8))
        if issued < 16: a(ld1(issued)); issued += 1
        if k % 4 == 3:
            a(f"s_cbranch_vccnz L_R_x3s{G}"); a.label(f"L_R_x3b{G}")
            slow.append((G, issued))
            if G == 0: stamp(11)
    stamp(12)
    FA = AC[1]
    a(f"s_add_u32 {n}, {n}, 1\ns_mov_b32 {qKVM}, {dKVM}")
    a(f"ds_write_b128 {vROT[0]}, {vr(FA, 4)} offset:6144\nds_write_b128 {vROT[0]}, {vr(FA + 4, 4)} offset:7168")
    a(f"s_waitcnt lgkmcnt(0)\ns_barrier")
    stamp(13)
    for q in range(4): a(f"ds_read_b64 {vr(AQ + 2*q, 2)}, {vRED} offset:{q*8192 + 6144}")
    a(f"s_waitcnt lgkmcnt(2)\nv_pk_add_f32 {vr(AQ, 2)}, {vr(AQ, 2)}, {vr(AQ + 2, 2)}")
    a(f"s_waitcnt lgkmcnt(0)\nv_pk_add_f32 {vr(AQ + 4, 2)}, {vr(AQ + 4, 2)}, {vr(AQ + 6, 2)}")
    a(f"v_pk_add_f32 {vr(AQ, 2)}, {vr(AQ, 2)}, {vr(AQ + 4, 2)}\nv_cvt_pk_bf16_f32 v{AQ}, v{AQ}, v{AQ+1}")
    a(f"v_cndmask_b32 v{AQ}, v{AQ}, {vM0}, {mINJ}")
    a(f"buffer_store_dword v{AQ}, {vX1P}, {WS}, {dX1Lp} offen\nbuffer_store_dword v{AQ}, {vX1P}, {WS}, {dX1Rp} offen sc1")
    stamp(14)
    a("s_branch L_R_step")
    for G, iss in slow:
        a.label(f"L_R_x3s{G}")
        a("s_nop 7")
        for f in range(8*G, 8*G + 8): a(wrd(f))
        a.label(f"L_R_x3r{G}")
        if diag: a(cnt(3).strip())
        for k in range(4*G, iss): a(ld1(k))
        a(f"s_add_u32 s3, s3, 1\ns_cmp_lt_u32 s3, {SPIN}\ns_cbranch_scc0 L_R_x3abort\ns_waitcnt vmcnt({iss - 4*G - 4})")
        chk([OF(k) + e for k in range(4*G, 4*G + 4) for e in range(4)], True)
        a(f"{CMP}\ns_cbranch_vccnz L_R_x3r{G}\ns_waitcnt lgkmcnt(0)")
        for k in range(4*G, 4*G + 4):
            for t in range(2):
                a(m3(k, t))
                if 2*k + t + 8 < 32: a(wrd(2*k + t + 8))
        a(f"s_branch L_R_x3b{G}")
    a.label("L_R_x3abort")
    a("s_mov_b32 s3, 7\ns_branch L_abort")
    for l, loads, back, code in retries:
        a.label(l)
        a(loads); a("s_waitcnt vmcnt(0)")
        spin_tail(a, back, code)
    a.label("L_R_done")
    a(f"buffer_store_dwordx4 {vr(OWN, 4)}, {vKMP}, {WS}, {dKVM} offen sc1\nbuffer_store_dwordx4 {vr(SM, 4)}, {vVMP}, {WS}, {dKVM} offen offset:2048 sc1")
    a(f"v_mov_b32 v{TMP+1}, 0")
    if diag:
        a(f"s_memrealtime s[92:93]\ns_waitcnt lgkmcnt(0)\ns_sub_u32 s92, s92, s98\ns_sub_u32 s93, s98, s90")
        a(f"s_lshl_b32 s94, {gx}, 5\ns_add_u32 s94, s94, {i}\ns_lshl_b32 s94, s94, 2\ns_add_u32 s94, s94, {w}\ns_lshl_b32 s94, s94, 4\ns_add_u32 s94, s94, {DIAG}")
        a(f"v_mov_b32 v20, s92\nv_mov_b32 v21, s93\nv_mov_b32 v22, s100\nv_mov_b32 v23, s101\nbuffer_store_dwordx4 v[20:23], v{TMP+1}, {WS}, s94 offen")
        if stamps:
            a(f"s_sub_u32 s94, s94, {DIAG}\ns_lshl_b32 s94, s94, 2\ns_add_u32 s94, s94, {DIAG + 0x4000}")
            for k in range(16): a(f"v_mov_b32 v{24+k}, s{64+k}")
            for k in range(4): a(f"buffer_store_dwordx4 {vr(24+4*k,4)}, v{TMP+1}, {WS}, s94 offen offset:{16*k}")
    a("s_endpgm")

import struct
def f2u(x): return struct.unpack("<I", struct.pack("<f", x))[0]
```

```python
import sys
from asmgen import *
from layout import *
from role_r import *
from role_g import *
from role_qa import *
KN = "interleave_layers__memory_aug_recurrent_mem_tr__glu_gated_geglu__prompt_kernel"

def prologue(a, diag):
    a("s_cmp_ge_u32 s2, 256\ns_cbranch_scc1 L_exit")
    a("s_load_dwordx16 s[64:79], s[0:1], 0\ns_load_dwordx8 s[80:87], s[0:1], 64\ns_load_dwordx4 s[88:91], s[0:1], 96")
    a(f"s_getreg_b32 {sXC}, hwreg(HW_REG_XCC_ID)\ns_and_b32 {sXC}, {sXC}, 15")
    a(f"v_readfirstlane_b32 {sW}, v0\ns_lshr_b32 {sW}, {sW}, 6\nv_and_b32 v0, 63, v0\ns_waitcnt lgkmcnt(0)")
    srd(a, 4, 90, WS_BYTES); srd(a, 12, 88, 256)
    if diag: a("s_memrealtime s[90:91]\ns_waitcnt lgkmcnt(0)")
    a(f"v_mov_b32 v2, 0\ns_cmp_lg_u32 {sW}, 0\ns_cbranch_scc1 L_tk")
    a(f"s_mov_b64 exec, 1\nv_mov_b32 v1, 1\ns_lshl_b32 s3, {sXC}, 5\nbuffer_atomic_add v1, v2, {DBG}, s3 offen sc0\ns_waitcnt vmcnt(0)\nds_write_b32 v2, v1\ns_waitcnt lgkmcnt(0)\ns_mov_b64 exec, -1")
    a.label("L_tk")
    a(f"s_barrier\nds_read_b32 v1, v2\ns_waitcnt lgkmcnt(0)\nv_readfirstlane_b32 {sSLOT}, v1\ns_barrier")
    a(f"s_cmp_ge_u32 {sSLOT}, 32\ns_cbranch_scc1 L_exit\ns_cmp_ge_u32 {sXC}, 8\ns_cbranch_scc1 L_exit")

def finish(a):
    a.label("L_abort")
    a(f"v_mov_b32 v1, s3\nv_mov_b32 v2, 8\nbuffer_store_dword v1, v2, {DBG}, 0 offen sc1")
    a.label("L_exit")
    a("s_endpgm")

def gen_r_only(D=9, diag=True, sel=0, **kw):
    a = Asm()
    a("; @launch grid=(256,1,1) block=(256,1,1) lds=163840")
    a('.amdgcn_target "amdgcn-amd-amdhsa--gfx950"\n.text')
    a(kernel_header(KN))
    prologue(a, diag)
    a(f"s_cmp_lt_u32 {sXC}, 2\ns_cbranch_scc1 L_role_R")
    arrive(a); a("s_endpgm")
    role_R(a, D, diag, sel, **kw)
    finish(a)
    a.fix_fast()
    a('.section .rodata,"a"\n.p2align 6')
    a(kernel_desc(KN))
    return a.text()
HEADER = open("interleave_layers__memory_aug_recurrent_mem_tr__glu_gated_geglu__prompt.s.ref").read().split("; Override")[0] if __import__("os").path.exists("interleave_layers__memory_aug_recurrent_mem_tr__glu_gated_geglu__prompt.s.ref") else ""
def far(a, cond, label):
    a(f"s_cbranch_{cond} {label}")
def gen(D=10, diag=False, sel=0, opt=None, stamps=False):
    opt = opt or {}
    a = Asm()
    a(HEADER.rstrip())
    a("; @launch grid=(256,1,1) block=(256,1,1) lds=163840")
    a('.amdgcn_target "amdgcn-amd-amdhsa--gfx950"\n.text')
    a(kernel_header(KN))
    prologue(a, diag)
    a(f"s_cmp_lt_u32 {sXC}, 2\ns_cbranch_scc1 L_role_R")
    a(f"s_sub_u32 s20, {sXC}, 2\ns_lshl_b32 s21, s20, 3\ns_add_u32 s21, s21, {sSLOT}        ; x*8+slot")
    a(f"s_sub_u32 s22, {sSLOT}, 8\ns_mul_i32 s22, s22, 6\ns_add_u32 s22, s22, s20\ns_add_u32 s22, s22, 48")
    a(f"s_cmp_lt_u32 {sSLOT}, 8\ns_cselect_b32 s23, s21, s22")
    a(f"s_sub_u32 s21, s23, 64\ns_cmp_lt_u32 s23, 48\ns_cselect_b32 s21, s23, s21\ns_cbranch_scc1 L_ln0\ns_cmp_lt_u32 s23, 112\ns_cbranch_scc1 L_disp")
    a.label("L_ln0")
    a(f"s_lshl_b32 s21, s21, 2\ns_add_u32 s21, s21, {sW}")
    ln0(a, "s21")
    a.label("L_disp")
    lo = 0
    for nm, n in (("WO", 24), ("DN", 24), ("KVA", 32), ("KVB", 16), ("QA", 32), ("GU", 56)):
        a(f"s_sub_u32 {sU}, s23, {lo}\ns_cmp_lt_u32 {sU}, {n}\ns_cbranch_scc1 L_role_{nm}"); lo += n
    a(f"s_sub_u32 {sU}, s23, {lo}\ns_branch L_role_LN")
    post = order_mask(D + 1)
    kv = order_mask(opt.get('kv0', 16), opt.get('kvp'))
    role_LN(a, diag, opt)
    role_KV(a, "A", kv, diag, opt); role_KV(a, "B", kv, diag, opt)
    role_QA(a, post, diag, opt)
    finish(a)
    role_P(a, "WO", post, diag, opt); role_P(a, "DN", post, diag, opt)
    role_GU(a, post, diag, opt)
    ro = dict(d3=4); ro.update(opt)
    role_R(a, D, diag, sel, stamps=stamps, opt=ro)
    a.fix_fast()
    a('.section .rodata,"a"\n.p2align 6')
    a(kernel_desc(KN))
    return a.text()
if __name__ == "__main__":
    open(sys.argv[1], "w").write(gen(diag=len(sys.argv) > 2))
```

```python
K = 1024
MB = 1 << 20
F_KV = 0x28000
F_QA = 0x2000
F_WO = 0x4000
F_DN = 0x6000
F_GU = 0x8000
F_LN = 0xC000
PROBE = 0x20000
DIAG = 0x10000
X1L = 0x40000
X1R = 0x80000
X3  = 0x100000
X2  = 0x200000
KX  = 4 * MB
VX  = 36 * MB
KVM = 68 * MB
XN  = 84 * MB
XR  = 100 * MB
OB  = 112 * MB
HB  = 144 * MB
PW  = 176 * MB
PD  = 200 * MB
QX  = 224 * MB
WS_END = 72 * MB
WS_BYTES = 256 * MB
OOB = 0x10000000
```

```python
from asmgen import *
from layout import *
from role_r import *
from weave import *

sU = "s19"
sI = "s20"; sC0, sC1 = "s21", "s22"
sMK = ["s[24:25]", "s[26:27]"]
nL, nB, nJ, nSRC, nTHR, nFB = "s28", "s29", "s30", "s31", "s32", "s33"
cL, cB, cJ = "s34", "s35", "s36"
pOFF, pVAL = "s37", "s38"
sRDY, sDMA, sLIVE = "s39", "s40", "s41"
mL, mB, mJ, mSRC, mTHR, mFB = "s80", "s81", "s82", "s83", "s84", "s85"
eO0, eO1 = "s86", "s87"
bSRC, bPUB, bO0, bO1 = "s42", "s43", "s44", "s45"
T0, T1, T2, T3 = "s92", "s93", "s94", "s95"
vL16, vDMA, vPOLL, vZ, vOUT, vPV = "v0", "v1", "v2", "v3", "v4", "v5"
vRD = ["v6", "v7", "v8"]
PR = 12
ACCS = [16, 40]
XF = 64
TM = 96
RINGN = 4

def Wn(r): return ("a", r) if r < 256 else ("v", r - 128)
def Wr(r, n=4): return vr(Wn(r)[1], n, Wn(r)[0])

def order_mask(s0, pattern=None):
    seq = [0] * s0; c0 = s0; c1 = 0; k = 0
    while c1 < 64:
        seq.append(1); c1 += 1
        n0 = 1 if pattern is None else pattern[k % len(pattern)]
        k += 1
        for _ in range(n0):
            if c0 < 64: seq.append(0); c0 += 1
    assert len(seq) == 128 and c0 == 64
    return sum(b << i for i, b in enumerate(seq))

def lane_consts(a, layout):
    a("v_mov_b32 v20, v0\nv_lshlrev_b32 v0, 4, v20\nv_mov_b32 v3, 0")
    a(f"v_and_b32 v21, 15, v20\nv_lshlrev_b32 v21, 4, v21\nv_lshrrev_b32 v22, 4, v20\nv_lshl_add_u32 v19, v22, 9, v21      ; g*512+m*16")
    if layout == "AL": a(f"v_mov_b32 {vDMA}, {vL16}\nv_mov_b32 {vRD[0]}, v19")
    else:
        a(f"s_and_b32 {T0}, {sW}, 1\ns_lshl_b32 {T0}, {T0}, 7\nv_xor_b32 {vDMA}, {T0}, {vL16}")
        a(f"v_bfe_u32 v21, v20, 2, 2\nv_lshlrev_b32 v23, 13, v21\nv_and_b32 v21, 1, v21\nv_lshlrev_b32 v21, 1, v21\nv_xor_b32 v22, v22, v21\nv_lshl_add_u32 v23, v22, 6, v23")
        a(f"v_and_b32 v22, 3, v20\nv_lshl_add_u32 {vRD[0]}, v22, 4, v23")
    a(f"v_add_u32 {vRD[1]}, 0x10000, {vRD[0]}\nv_add_u32 {vRD[2]}, 0x20000, {vRD[0]}")

def poll_off(a, first, count):
    a(f"v_min_u32 v21, {count - 1}, v20\nv_add_u32 v21, {first}, v21\nv_lshlrev_b32 {vPOLL}, 7, v21")

def zero_flags(a, lstride):
    a(f"buffer_store_dword {vZ}, {vZ}, {WS}, {bPUB} offen sc1\ns_add_u32 {T0}, {bPUB}, {lstride}\nbuffer_store_dword {vZ}, {vZ}, {WS}, {T0} offen sc1")

def load_weights(a, units, pol=''):
    a(f"s_lshl_b32 s46, {sW}, 15")
    def dma(B):
        for k, (S, v, sb, c) in enumerate(units[B][0]):
            a(f"s_add_u32 {T0}, {sb}, {c}\ns_add_u32 m0, s46, {(B % 16) * 2048 + k * 1024}\nbuffer_load_dwordx4 {v}, {S}, {T0} offen{pol} lds")
    n = len(units)
    for B in range(min(16, n)): dma(B)
    for B in range(n):
        a(f"s_waitcnt vmcnt({min(30, 2 * (n - 1 - B))})")
        for (r, v, off) in units[B][1]:
            a(f"ds_read_b64_tr_b16 {Wr(r, 2)}, {v} offset:{(B % 16) * 2048 + off}")
        if B + 16 < n: a("s_waitcnt lgkmcnt(0)"); dma(B + 16)
    a("s_waitcnt lgkmcnt(0)")

def stage_addrs(a, rs):
    a(f"s_mov_b32 {T1}, {rs}\ns_lshl_b32 {T2}, {sW}, 15")
    a(f"v_lshrrev_b32 v21, 2, v20\nv_mul_lo_u32 v21, v21, {T1}\nv_and_b32 v22, 3, v20\nv_lshlrev_b32 v23, 4, v22\nv_add_u32 v31, v21, v23")
    a(f"v_lshrrev_b32 v21, 1, v20\nv_mul_lo_u32 v21, v21, {T1}\nv_and_b32 v24, 1, v20\nv_lshl_add_u32 v32, v24, 4, v21")
    a(f"v_lshrrev_b32 v24, 4, v20\nv_bfe_u32 v25, v20, 2, 2\nv_lshl_add_u32 v26, v25, 6, {T2}")
    a(f"v_lshl_add_u32 v27, v24, 9, v26\nv_add_u32 v33, v27, v23\nv_lshl_add_u32 v34, v22, 3, v27")
    a(f"v_lshl_add_u32 v27, v24, 8, v26\nv_add_u32 v35, v27, v23")
    a(f"v_lshl_add_u32 v26, v25, 5, {T2}\nv_lshl_add_u32 v27, v24, 8, v26\nv_lshl_add_u32 v36, v22, 3, v27")

def pair_units(S, sb, rs, nks, nt, t0, mode):
    U = []
    for s in range(nks):
        d = [(S, "v31", sb, (32 * s + 16 * k) * rs) for k in range(2)]
        rd = []
        for t in range(2):
            for u in range(2):
                r = (s * nt + t0 + t) * 4 + 2 * u
                rd.append({"A": (r, "v33", u * 256 + t * 8), "V": (r, "v34", u * 256 + t * 32), "O": (r, "v35", u * 1024 + t * 8)}[mode])
        U.append((d, rd))
    return U

def next_job(src_l, src_b, flag_base, flag_l, l0_ready):
    t = f"s_cmp_lt_u32 {sI}, 64\ns_cselect_b64 s[88:89], {sMK[0]}, {sMK[1]}|s_bitcmp1_b64 s[88:89], {sI}\ns_cselect_b32 {mL}, 1, 0\ns_cselect_b32 {mB}, {sC1}, {sC0}"
    t += f"|s_add_u32 {sC1}, {sC1}, {mL}|s_xor_b32 s88, {mL}, 1|s_add_u32 {sC0}, {sC0}, s88|s_lshl_b32 {mJ}, {mL}, 6|s_add_u32 {mJ}, {mJ}, {mB}"
    t += f"|s_mul_i32 s88, {mL}, {src_l}|s_mul_i32 s89, {mB}, {src_b}|s_add_u32 {mSRC}, s88, s89|s_add_u32 {mSRC}, {mSRC}, {bSRC}|s_add_u32 {mTHR}, {mB}, 1"
    if l0_ready: t += f"|s_mul_i32 {mTHR}, {mTHR}, {mL}|s_mov_b32 {mFB}, {flag_base}"
    else: t += f"|s_mul_i32 {mFB}, {mL}, {flag_l}|s_add_u32 {mFB}, {mFB}, {flag_base}"
    t += f"|s_cmp_lt_u32 {sI}, 128\ns_cselect_b32 {mSRC}, {mSRC}, {OOB}\ns_cselect_b32 {mTHR}, {mTHR}, 0|s_add_u32 {sI}, {sI}, 1"
    return t.split("|")

def poll(fb): return f"buffer_load_dword v{PR}, {vPOLL}, {WS}, {fb} offen sc1"
def pchk(thr): return f"v_cmp_gt_u32 vcc, {thr}, v{PR}"
POLL = poll(nFB); PCHK = pchk(nTHR)
vCNT, vOWN, sPEND, sJN, sW0 = "v9", "v11", "s58", "s59", "s57"
PQ = 116
def pub1(val): return [f"v_mov_b32 v{PR+1}, {val}", f"s_and_b32 {T3}, {val}, {sW0}"]
PUB2 = f"ds_write_b32 {vOWN}, v{PR+1}"
PUB3 = [f"ds_read_b128 {vr(PQ, 4)}, {vCNT}", f"v_mov_b32 {vPV}, {pVAL}", f"v_min3_u32 v{PQ}, v{PQ}, v{PQ+1}, v{PQ+2}", f"v_min_u32 v{PQ}, v{PQ}, v{PQ+3}", f"v_cmp_gt_u32 vcc, {T3}, v{PQ}"]
PUB4 = f"buffer_store_dword {vPV}, {vZ}, {WS}, {pOFF} offen sc1"
def pub_note(a):
    a(f"s_add_u32 {T0}, {sJN}, 1")
    for x in pub1(T0) + [PUB2]: a(x)
def pub_try(a):
    d = a.uniq("L_pd")
    a(f"s_cmp_lg_u32 {sPEND}, 0\ns_cbranch_scc1 {d}")
    a("\n".join(PUB3[:2] + ["s_waitcnt lgkmcnt(0)"] + PUB3[2:]) + f"\ns_cbranch_vccnz {d}")
    a(f"{PUB4}\ns_mov_b32 {sPEND}, {OOB}")
    a.label(d)

def gstamp(k):
    return f"s_memtime s[100:101]\ns_waitcnt lgkmcnt(0)\ns_sub_u32 s99, s100, s98\ns_mov_b32 s98, s100\nv_mov_b32 v127, s99\nv_add_u32 v{252 - 0}, v252, v252".replace("v_add_u32 v252, v252, v252", f"v_readlane_b32 s99, v126, {k}\ns_nop 1\nv_readfirstlane_b32 s101, v127\ns_nop 1\ns_add_u32 s99, s99, s101\nv_writelane_b32 v126, s99, {k}")

class Gemm:
    def __init__(self, a, name, tiles, nks, layout, nj, pub_l, ostride, epilogue, code, overlap=0, last=128, diag=False, hooks=None, pubgap=50, dspan=0.7, pollback=45, crit=0, hold=True, stfirst=True, d0=12, ov=2, pubgap2=6):
        self.__dict__.update(locals()); self.nt = len(tiles); self.hooks = hooks or {}
        n = 2 * nks
        ng = self.ng = (nks + 1) // 2
        if overlap: self.gaddr = lambda p, G: ((ng - 1 - G) * 4096 if p == 0 else 163840 - 2048 * nks + G * 4096)
        else: self.gaddr = lambda p, G: p * nks * 2048 + G * 4096
        five = n % 4
        self.slot = [XF, XF + 8, XF + 16, XF + 24, 216] * five + [XF, XF + 8, XF + 16, XF + 24] * ((n - 5 * five) // 4)
        assert len(self.slot) == n
    def dmas(self, p):
        out = []; sl = f"s{46 + p}"
        ld = lambda o: f"buffer_load_dwordx4 {vDMA}, {WS}, {T2} offen offset:{o} sc1 lds"
        if self.layout == "Q4":
            for r in range(4):
                o = (r // 2) * 32768 + (r % 2) * 4096
                out.append(f"s_add_u32 {T2}, {sDMA}, {o}\ns_add_u32 m0, {sl}, {p * 65536 + o}\n{ld(0)}")
                out += [ld(1024 * k) for k in range(1, 4)]
            return out
        full = self.nks // 8
        rounds = list(range(full))
        if self.overlap: rounds = rounds[1:] + rounds[:1]
        for r in rounds:
            if self.overlap and r == 0: out.append("s_barrier")
            out.append(f"s_add_u32 {T2}, {sDMA}, {r * 16384}\ns_add_u32 m0, {sl}, {self.gaddr(p, 4 * r)}\n{ld(0)}")
            out += [ld(1024 * k) for k in range(1, 4)]
        for G in range(4 * full, self.ng):
            ins = f"s_add_u32 {T2}, {sDMA}, s96\ns_add_u32 {T2}, {T2}, {G * 4096}\ns_add_u32 m0, s97, {self.gaddr(p, G)}\n{ld(0)}"
            if 2 * G + 1 == self.nks:
                l = self.a.uniq("L_sk"); ins = f"s_cmp_lt_u32 {sW}, 2\ns_cbranch_scc0 {l}\n{ins}\n{l}:"
            out.append(ins)
        return out
    def setup(self):
        a = self.a
        for p in range(2):
            d = 8192 if self.layout == "Q4" else (-4096 if (self.overlap and p == 0) else 4096)
            a(f"s_mul_i32 s{46 + p}, {sW}, {d}")
        a(f"s_mul_i32 s96, {sW}, -3072\ns_lshl_b32 s97, {sW}, 10")
    def rd(self, p, s, tt):
        ad = p * 65536 + tt * 32768 + s * 256 if self.layout == "Q4" else self.gaddr(p, s // 2) + (s % 2) * 2048 + tt * 256
        return f"ds_read_b128 {vr(self.slot[s + p * self.nks] + 4 * tt, 4)}, {vRD[ad >> 16]} offset:{ad & 0xffff}"
    def mf(self, p, s):
        out = []
        for tt in range(2):
            for t, o in enumerate(self.tiles):
                acc = vr(ACCS[p] + 4 * (tt * self.nt + t), 4); X = vr(self.slot[s + p * self.nks] + 4 * tt, 4); Wt = Wr((s * self.nt + t) * 4)
                A, B = (Wt, X) if o == "T" else (X, Wt)
                out.append(f"v_mfma_f32_16x16x32_bf16 {acc}, {A}, {B}, {'0' if s == 0 else acc}")
        return out
    def shift(self, live):
        t = [f"s_cmp_eq_u64 vcc, 0\ns_cselect_b32 {sRDY}, 1, 0\ns_cselect_b32 {sDMA}, {mSRC}, {OOB}"]
        if self.last <= 128: t.append(f"s_cmp_le_u32 {sI}, 128\ns_cselect_b32 {sRDY}, {sRDY}, 0")
        if 'shift' not in self.hooks: t.append(f"s_mov_b32 {sLIVE}, {0 if live else OOB}")
        x, y = (nL, mL) if self.crit == 0 else (mL, nL)
        t += [f"s_andn2_b32 s23, {x}, {y}", f"s_andn2_b32 s23, s23, {sRDY}", f"s_cmp_le_u32 {sI}, 128\ns_cselect_b32 s23, s23, 0"]
        return t
    def rotate(self):
        if 'shift' in self.hooks: t = []
        else: t = self.outs()[:3] + [f"s_max_u32 {x}, {x}, {sLIVE}" for x in (eO0, eO1)]
        return t, self.outs()[3:] + [f"s_mov_b32 {x}, {y}" for x, y in ((cL, nL), (cB, nB), (cJ, nJ), (nL, mL), (nB, mB), (nJ, mJ), (nSRC, mSRC), (nTHR, mTHR), (nFB, mFB))]
    def outs(self):
        return [f"s_mul_i32 {eO0}, {cJ}, {self.ostride}", f"s_add_u32 {eO1}, {eO0}, {bO1}", f"s_add_u32 {eO0}, {eO0}, {bO0}",
                f"s_mul_i32 {pOFF}, {cL}, {self.pub_l}", f"s_add_u32 {pOFF}, {pOFF}, {bPUB}", f"s_add_u32 {pVAL}, {cB}, 1"]
    def refill(self, p, tag):
        a = self.a; l = f"L_{self.name}_sp{tag}"; d = l + "d"
        if 'refill' in self.hooks: self.hooks['refill'](p)
        a("s_mov_b32 s3, 0"); a.label(l)
        pub_try(a)
        a(f"{POLL}\ns_waitcnt vmcnt(0)\n{PCHK}\ns_cbranch_vccz {d}")
        spin_tail(a, l, self.code)
        a.label(d)
        a(f"s_mov_b32 {sDMA}, {nSRC}")
        for x in self.dmas(p):
            if x != 's_barrier': a(x)
        a(poll(mFB))
        a("s_waitcnt vmcnt(0) lgkmcnt(0)\ns_barrier")
        for s in range(RINGN - 1): a(self.rd(p, s, 0)); a(self.rd(p, s, 1))
        a(pchk(mTHR))
        for x in self.hooks.get('tail', []) + self.shift(False): a(x)
    def emit(self):
        a = self.a; nm = self.name; H = self.hooks; nks = self.nks; per = 2 * self.nt
        self.setup()
        a(f"s_mov_b32 {sI}, 0\ns_mov_b32 {sC0}, 0\ns_mov_b32 {sC1}, 0\ns_mov_b32 {pVAL}, 0\ns_mov_b32 {cL}, 0\ns_mov_b32 {cB}, -1\ns_mov_b32 {cJ}, 0")
        if 'init' in H: H['init']()
        for x in self.nj: a(x)
        for x, y in ((nL, mL), (nB, mB), (nJ, mJ), (nSRC, mSRC), (nTHR, mTHR), (nFB, mFB)): a(f"s_mov_b32 {x}, {y}")
        for x in self.nj: a(x)
        a("s_barrier          ; weight staging done in every wave")
        cnt = 2048 if self.overlap else 163824
        a(f"v_mov_b32 {vCNT}, {cnt}\ns_lshl_b32 {T0}, {sW}, 2\nv_add_u32 {vOWN}, {T0}, {vCNT}\nds_write_b32 {vOWN}, {vZ}\ns_mov_b32 {sPEND}, {OOB}\ns_mov_b32 {sJN}, -1")
        a(f"s_cmp_eq_u32 {sW}, 0\ns_cselect_b32 {sW0}, -1, 0\ns_cselect_b32 {bPUB}, {bPUB}, {OOB}")
        self.refill(0, "i")
        if self.diag in (3, 4, 5): a("v_mov_b32 v126, 0\ns_memtime s[98:99]\ns_waitcnt lgkmcnt(0)")
        assert (2 * nks) % RINGN == 0 or True
        primed = lambda p: [I(self.rd(p, s, tt)).w for s in range(RINGN - 1) for tt in range(2)]
        tails = []
        for p in range(2):
            a.label(f"L_{nm}_top{p}")
            if self.diag == 2: trace(a, self.diag, sI, 0)
            st = Stream(a, primed(p))
            if self.diag == 3: st.emit(gstamp(0))
            if 'head' in H: H['head'](p, st)
            if self.diag == 3: st.emit(gstamp(1))
            cut = nks - (RINGN - 1)
            M = []
            for s in range(cut):
                for k, m in enumerate(self.mf(p, s)): M.append((m, [self.rd(p, s + RINGN - 1, k)] if k < 2 else [], I(self.rd(p, s | 1 if s else 0, 1)).w))
            mark = {}
            dm = self.dmas(1 - p)
            n = len(M); end = int(n * self.dspan)
            MARK = lambda: "; stores issued" + " " * (0 * mark.setdefault('st', st.nv))
            def PUBW():
                assert not self.overlap or dm[-1] in qs[0].it
                w = f"s_waitcnt vmcnt({min(63, st.nv - mark['st'])})"
                if self.diag == 4: w = gstamp(0) + "\n" + w + "\n" + gstamp(1)
                return f"{w}\ns_barrier"
            BAR = lambda: "; all stored" + " " * (0 * mark.setdefault('bar', 1))
            r0, r1 = self.rotate()
            ROT = lambda: "; rotated" + " " * (0 * mark.setdefault('rot', 1))
            if 'epi' in H: epi = H['epi'](p, st, n, MARK, mark)
            else: epi = r0 + [ROT, ('at', 4)] + self.epilogue(1 - p) + [MARK, f"s_add_u32 {sJN}, {sJN}, 1", ('gap', self.pubgap - 4), f"s_max_u32 {pOFF}, {pOFF}, {sPEND}", f"s_mov_b32 {sPEND}, 0", PUB3[1], ('gap', 3), ('at', per * 10 if self.overlap else 0), PUBW, BAR, PUB4]; r1 = [('until', lambda: 'rot' in mark)] + r1
            dq = []
            if 'vq' in H: dq = H['vq'](p, dm, n, mark)
            else:
                if self.stfirst: dq.append(('until', lambda: 'st' in mark))
                for k, x in enumerate(dm):
                    if x == "s_barrier": dq += [('until', lambda: 'bar' in mark)]; continue
                    dq += [('at', self.d0 + k * (end - self.d0) // len(dm))] + split_dma(x)
            if 'late' in H: q3 = [('at', 40)] + r1 + self.nj + [('until', lambda: 'st' in mark)] + H['late'](p)
            else: q3 = r1 + [('at', n // 4)] + self.nj + [('at', n - self.pollback), poll(mFB)]
            qs = [Q(dq), Q(epi), Q(q3)]
            if self.diag == 3:
                sq = []
                for k in range(1, 8): sq += [('at', k * n // 8), gstamp(1 + k)]
                qs.append(Q(sq)); qs = [qs[0], qs[1], qs[2], qs[3]]
            weave(st, M, qs, over=lambda sl: self.ov if 'st' not in mark else 0)
            left = sum(1 for q in qs for x in q.it if not isinstance(x, tuple))
            if left: print(f"note: {nm} {left} fillers left over")
            flush(st, [qs[1], qs[0], qs[2]])
            if self.diag == 2: trace(a, self.diag, sI, 1); st.ds = []
            if self.diag == 3: st.emit(gstamp(9))
            a(f"s_cmp_eq_u32 {sRDY}, 0\ns_cbranch_scc1 L_{nm}_slow{p}")
            tails.append(list(st.ds))
            M = []
            for s in range(cut, nks):
                for k, m in enumerate(self.mf(p, s)): M.append((m, [], I(self.rd(p, s, 1)).w))
            ew = f"s_waitcnt vmcnt({st.nv - st.lastld}) lgkmcnt(0)\ns_barrier"
            if self.diag == 4: ew = gstamp(0) + "\n" + ew.replace("\n", "\n" + gstamp(2) + "\n") + "\n" + gstamp(3)
            nx = [('at', 2), ew] + [self.rd(1 - p, s, tt) for s in range(1) for tt in range(2)]
            nx += [('at', per + 1)] + [self.rd(1 - p, 1, tt) for tt in range(2)] + [('at', 2 * per + 1)] + [self.rd(1 - p, 2, tt) for tt in range(2)]
            qs = [Q(nx), Q([('at', 3)] + pchk(mTHR).split("\n") + [('gap', 2)] + self.shift(True)), Q([('at', 3)] + H.get('tail', []) + H.get('tail2', []))]
            weave(st, M, qs); flush(st, qs)
            a(f'; model cycles {st.cyc}')
            if self.hold: a(f"s_cmp_eq_u32 s23, 1\ns_cbranch_scc1 L_{nm}_hold{p}")
        a(f"s_branch L_{nm}_top0")
        for p in range(2):
            a.label(f"L_{nm}_slow{p}")
            if self.diag == 4: a(gstamp(0))
            st = Stream(a, tails[p])
            if self.diag == 2: trace(a, self.diag, sI, 3)
            for s in range(nks - (RINGN - 1), nks):
                for m in self.mf(p, s): st.emit(m)
            if 'shift' not in H:
                for x in self.outs(): a(x)
                for x in self.epilogue(p):
                    if not isinstance(x, tuple): st.emit(x)
                a("s_waitcnt vmcnt(0)"); pub_note(a); pub_try(a); pub_try(a)
                a(f"s_cmp_gt_u32 {sI}, {self.last + 1}\ns_cbranch_scc1 L_{nm}_done")
            self.refill(1 - p, str(p))
            if self.diag == 3: a(gstamp(10))
            if self.diag == 4: a(gstamp(5))
            if self.hold: a(f"s_cmp_eq_u32 s23, 1\ns_cbranch_scc1 L_{nm}_hs{p}")
            a(f"s_branch L_{nm}_top{1 - p}")
            if not self.hold: continue
            a.label(f"L_{nm}_hold{p}")
            if self.diag == 4: a(gstamp(0))
            if self.diag == 2: trace(a, self.diag, sI, 2)
            a(poll(mFB))
            for x in self.outs(): a(x)
            ep = [x for x in self.epilogue(p) if not isinstance(x, tuple)]
            for x in ep: a(x)
            a(f"s_waitcnt vmcnt({sum('buffer_store' in x for x in ep)})\n{pchk(mTHR)}\ns_cbranch_vccz L_{nm}_hd{p}")
            a(f"{poll(mFB)}\ns_waitcnt vmcnt(1)"); pub_note(a)
            a(f"s_waitcnt vmcnt(0)"); pub_try(a)
            a(f"{pchk(mTHR)}\ns_cbranch_vccz L_{nm}_hd{p}")
            a.label(f"L_{nm}_hs{p}")
            a("s_mov_b32 s3, 0"); a.label(f"L_{nm}_hl{p}")
            pub_try(a)
            a(f"{poll(mFB)}\ns_waitcnt vmcnt(0)\n{pchk(mTHR)}\ns_cbranch_vccz L_{nm}_hd{p}")
            spin_tail(a, f"L_{nm}_hl{p}", self.code + 20)
            a.label(f"L_{nm}_hd{p}")
            a(f"s_mov_b32 {sRDY}, 1\ns_mov_b32 {sDMA}, {mSRC}\ns_mov_b32 {sLIVE}, {OOB}")
            if self.diag == 3: a(gstamp(10))
            if self.diag == 4: a(gstamp(4))
            a(f"s_branch L_{nm}_top{1 - p}")
        if 'extra' in H: H['extra']()
        a.label(f"L_{nm}_done")
        a("s_mov_b32 s3, 0"); a.label(f"L_{nm}_dl")
        pub_try(a)
        a(f"s_cmp_lg_u32 {sPEND}, 0\ns_cbranch_scc1 L_{nm}_dd")
        spin_tail(a, f"L_{nm}_dl", self.code + 40)
        a.label(f"L_{nm}_dd")
        end_role(a, self.diag)

def end_role(a, diag):
    if diag in (3, 4, 5):
        a(f"s_lshl_b32 s94, {sXC}, 5\ns_add_u32 s94, s94, {sSLOT}\ns_lshl_b32 s94, s94, 2\ns_add_u32 s94, s94, {sW}\ns_lshl_b32 s94, s94, 8\ns_add_u32 s94, s94, {WS_END}")
        a(f"v_lshrrev_b32 v20, 2, v0\nbuffer_store_dword v126, v20, {WS}, s94 offen")
    elif diag:
        a(f"s_memrealtime s[92:93]\ns_memtime s[94:95]\ns_waitcnt lgkmcnt(0)\ns_sub_u32 s92, s92, s90\ns_sub_u32 s93, s94, s100")
        a(f"s_lshl_b32 s94, {sXC}, 5\ns_add_u32 s94, s94, {sSLOT}\ns_lshl_b32 s94, s94, 2\ns_add_u32 s94, s94, {sW}\ns_lshl_b32 s94, s94, 4\ns_add_u32 s94, s94, {DIAG}")
        a(f"v_mov_b32 v20, s92\nv_mov_b32 v21, s98\nv_mov_b32 v22, {sU}\nv_mov_b32 v23, s93\nv_mov_b32 v24, 0\nbuffer_store_dwordx4 v[20:23], v24, {WS}, s94 offen")
    a("s_endpgm")
def mark_start(a, diag):
    if diag: a("s_memrealtime s[98:99]\ns_memtime s[100:101]\ns_waitcnt lgkmcnt(0)\ns_sub_u32 s98, s98, s90")

def set_mask(a, m):
    for k in range(4): a(f"s_mov_b32 s{24 + k}, {hex((m >> (32 * k)) & 0xffffffff)}")
cvt = lambda T, A, k: f"v_cvt_pk_bf16_f32 v{T + k}, v{A + 2*k}, v{A + 2*k + 1}"

def role_PJ(a, mask, diag, opt):
    a.label("L_role_PJ")
    lane_consts(a, "Q4"); poll_off(a, 0, 8); set_mask(a, mask)
    hd, kd, dt = "s48", "s51", "s56"
    a(f"s_and_b32 {hd}, {sU}, 31\ns_lshr_b32 {kd}, {sU}, 5\ns_lshl_b32 {dt}, {kd}, 2\ns_add_u32 {dt}, {dt}, {sW}")
    a(f"s_lshl_b32 {T0}, {sU}, 7\ns_add_u32 {bPUB}, {T0}, {F_KV}")
    a(f"s_lshl_b32 {T0}, {hd}, 13\ns_lshl_b32 {T1}, {dt}, 10\ns_add_u32 {bO1}, {T0}, {T1}\ns_add_u32 {bO1}, {bO1}, {VX}")
    a(f"s_lshl_b32 {T1}, {sW}, 11\ns_add_u32 {bO0}, {T0}, {T1}\ns_mul_i32 {T1}, {kd}, {QX - KX}\ns_add_u32 {bO0}, {bO0}, {T1}\ns_add_u32 {bO0}, {bO0}, {KX}")
    a(f"s_lshl_b32 {T0}, {sW}, 13\ns_add_u32 {bSRC}, {T0}, {XN}")
    zero_flags(a, 8192)
    stage_addrs(a, 8192)
    arrive(a)
    a(f"s_cmp_eq_u32 {kd}, 0\ns_cselect_b32 s8, s{P_WK}, s{P_WQ}\ns_cselect_b32 s9, s{P_WK+1}, s{P_WQ+1}\ns_mov_b32 s10, {8 * MB}\ns_mov_b32 s11, 0x20000")
    srd(a, 52, P_WV, 8 * MB)
    a(f"s_lshl_b32 {T0}, {hd}, 8\ns_lshl_b32 {T1}, {sW}, 6\ns_add_u32 s49, {T0}, {T1}\ns_lshl_b32 {T1}, {dt}, 5\ns_add_u32 s50, {T0}, {T1}")
    U = pair_units("s[8:11]", "s49", 8192, 32, 3, 0, "A")
    for s2 in range(16):
        U.append(([("s[52:55]", "v32", "s50", 32 * (2 * s2 + k) * 8192) for k in range(2)],
                  [(((2 * s2 + k) * 3 + 2) * 4 + 2 * u, "v36", k * 1024 + u * 128) for k in range(2) for u in range(2)]))
    load_weights(a, U, opt.get('pol_PJ', ''))
    wait_start(a, 10); mark_start(a, diag)
    def epi(p):
        o = []; A = ACCS[p]
        for tt in range(2):
            o += [cvt(TM + 4 * tt, A + 12 * tt, k) for k in range(4)]
            o.append(f"buffer_store_dwordx4 {vr(TM + 4 * tt, 4)}, {vL16}, {WS}, {eO0} offen offset:{tt * 1024} sc1")
        o += [cvt(TM + 8 + 2 * tt, A + 4 * (tt * 3 + 2), k) for tt in range(2) for k in range(2)]
        o.append(f"buffer_store_dwordx4 {vr(TM + 8, 4)}, {vL16}, {WS}, {eO1} offen sc1")
        return o
    Gemm(a, "PJ", ["T", "T", "N"], 32, "Q4", next_job(8 * MB, 65536, F_LN + 1024, 0, True), 8192, 1 << 18, epi, 11, diag=diag, crit=1, **opt.get("PJ", {})).emit()

def role_GU(a, mask, diag, opt):
    a.label("L_role_GU")
    lane_consts(a, "Q4"); poll_off(a, 0, 8); set_mask(a, mask)
    a(f"s_lshl_b32 {T0}, {sU}, 7\ns_add_u32 {bPUB}, {T0}, {F_GU}")
    a(f"s_lshl_b32 {T0}, {sU}, 2\ns_add_u32 {T0}, {T0}, {sW}\ns_lshl_b32 s49, {T0}, 5\ns_lshl_b32 {T0}, {T0}, 10\ns_add_u32 {bO0}, {T0}, {HB}\ns_mov_b32 {bO1}, 0")
    a(f"s_lshl_b32 {T0}, {sW}, 13\ns_add_u32 {bSRC}, {T0}, {XN + 4 * MB}")
    zero_flags(a, 8192)
    stage_addrs(a, 7168)
    arrive(a)
    srd(a, 8, P_WG, 7 * MB); srd(a, 52, P_WU, 7 * MB)
    U = [([(S, "v32", "s49", 32 * s * 7168) for S in ("s[8:11]", "s[52:55]")],
          [((s * 2 + t) * 4 + 2 * u, "v36", t * 1024 + u * 128) for t in range(2) for u in range(2)]) for s in range(32)]
    if opt.get('late_w', 0): wait_start(a, 12)
    load_weights(a, U, opt.get('pol_GU', ''))
    if not opt.get('late_w', 0): wait_start(a, 12)
    mark_start(a, diag)
    k0 = -2 * math.log2(math.e) * math.sqrt(2 / math.pi)
    a(f"s_mov_b32 s50, {hex(f2u(k0 * 0.044715))}\ns_mov_b32 s51, s50\nv_mov_b32 v10, {hex(f2u(k0))}")
    def epi(p):
        A = ACCS[p]; o = []
        prs = [(A + 8 * tt + 2 * k, A + 8 * tt + 4 + 2 * k, TM + 4 * tt + 2 * k) for tt in range(2) for k in range(2)]
        g = [A + 8 * tt + k for tt in range(2) for k in range(4)]
        o += [f"v_mul_f32 v{TM + k}, v{g[k]}, v{g[k]}" for k in range(8)]
        o += [f"v_fma_f32 v{TM + k}, v{TM + k}, s50, v10" for k in range(8)]
        o += [f"v_mul_f32 v{TM + k}, v{TM + k}, v{g[k]}" for k in range(8)]
        o += [f"v_exp_f32 v{TM + k}, v{TM + k}" for k in range(8)]
        o += [f"v_mul_f32 v{TM + 8 + k}, v{g[k]}, v{g[k] + 4}" for k in range(8)]
        o += [f"v_add_f32 v{TM + k}, 1.0, v{TM + k}" for k in range(8)]
        o += [f"v_rcp_f32 v{TM + k}, v{TM + k}" for k in range(8)]
        o += [f"v_mul_f32 v{TM + k}, v{TM + k}, v{TM + 8 + k}" for k in range(8)]
        o += [cvt(TM + 16, TM, k) for k in range(4)] + [('gap', 1)]
        o += [f"v_permlane16_swap_b32 v{TM + 16}, v{TM + 18}", f"v_permlane16_swap_b32 v{TM + 17}, v{TM + 19}"]
        o.append(f"buffer_store_dwordx4 {vr(TM + 16, 4)}, {vL16}, {WS}, {eO0} offen sc1")
        return o
    Gemm(a, "GU", ["T", "T"], 32, "Q4", next_job(8 * MB, 65536, F_LN, 2048, False), 8192, 1 << 18, epi, 13, diag=diag, **opt.get('GU', dict(stfirst=False, d0=1, ov=3))).emit()

def role_P(a, nm, mask, diag, opt):
    wo = nm == "WO"
    nks = 43 if wo else 38
    a.label("L_role_" + nm)
    lane_consts(a, "AL"); set_mask(a, mask)
    sl, cg, k0 = "s48", "s49", "s50"
    a(f"s_lshr_b32 {sl}, {sU}, 3\ns_and_b32 {cg}, {sU}, 7")
    if wo: a(f"s_mul_i32 {k0}, {sl}, 43\ns_min_u32 {k0}, {k0}, 85\ns_lshr_b32 {T0}, {k0}, 2\ns_min_u32 {T0}, {T0}, 20"); poll_off(a, T0, 12)
    else: a(f"s_mul_i32 {k0}, {sl}, 37\ns_lshr_b32 {T0}, {k0}, 1\ns_min_u32 {T0}, {T0}, 36"); poll_off(a, T0, 20)
    a(f"s_lshl_b32 {T0}, {sU}, 7\ns_add_u32 {bPUB}, {T0}, {F_WO if wo else F_DN}")
    a(f"s_lshl_b32 {T0}, {k0}, 11\ns_lshl_b32 {T1}, {sW}, 12\ns_add_u32 {bSRC}, {T0}, {T1}\ns_add_u32 {bSRC}, {bSRC}, {OB if wo else HB}")
    a(f"s_lshl_b32 {T0}, {sl}, 16\ns_lshl_b32 {T1}, {cg}, 10\ns_add_u32 {T0}, {T0}, {T1}\ns_lshl_b32 {T1}, {sW}, 8\ns_add_u32 {T0}, {T0}, {T1}\ns_add_u32 {bO0}, {T0}, {PW if wo else PD}")
    a(f"v_bfe_u32 v21, v20, 2, 2\nv_lshlrev_b32 v21, 13, v21\nv_lshrrev_b32 v22, 4, v20\nv_lshl_add_u32 v21, v22, 6, v21\nv_and_b32 v22, 3, v20\nv_lshl_add_u32 {vOUT}, v22, 4, v21")
    zero_flags(a, 4096)
    stage_addrs(a, 2048)
    if wo:
        l = a.uniq("L_np")
        a(f"s_mov_b32 s56, 1\ns_cmp_lg_u32 {sU}, 0\ns_cbranch_scc1 {l}")
        probe_near(a, "s56")
        a.label(l)
    arrive(a, "s56" if wo else "1")
    srd(a, 8, P_WO if wo else P_WD, (8 if wo else 7) * MB)
    a(f"s_lshl_b32 {T0}, {k0}, 16\ns_lshl_b32 {T1}, {cg}, 8\ns_add_u32 {T0}, {T0}, {T1}\ns_lshl_b32 {T1}, {sW}, 6\ns_add_u32 s51, {T0}, {T1}")
    if opt.get('late_w', 0): wait_start(a, 14)
    load_weights(a, pair_units("s[8:11]", "s51", 2048, nks, 2, 0, "O" if wo else "A"), opt.get('pol_' + nm, ''))
    l = a.uniq("L_z")
    a(f"s_cmp_lt_u32 {sl}, {2 if wo else 1}\ns_cbranch_scc1 {l}")
    for r in range(8): a(f"v_accvgpr_write_b32 a{r}, 0")
    a.label(l)
    if not opt.get('late_w', 0): wait_start(a, 14)
    mark_start(a, diag)
    a(f"s_add_u32 {bO1}, {bO0}, 32768")
    def epi(p):
        o = []
        for tt in range(2):
            o += [cvt(TM + 4 * tt, ACCS[p] + 8 * tt, k) for k in range(4)]
            o.append(f"buffer_store_dwordx4 {vr(TM + 4 * tt, 4)}, {vOUT}, {WS}, {(eO0, eO1)[tt]} offen sc1")
        return o
    nj = next_job(16 * MB, 262144, F_QA, 4096, False) if wo else next_job(16 * MB, 262144, F_GU, 8192, False)
    Gemm(a, nm, ["T", "T"], nks, "AL", nj, 4096, 192 * 1024, epi, 15 if wo else 16, overlap=6 if wo else 0, diag=diag, **opt.get(nm, {})).emit()
```

```python
from role_g import *

def role_AT(a, diag, opt):
    a.label("L_role_AT")
    lane_consts(a, "AL")
    hd, ly, sB = "s48", "s49", "s21"
    bKX, bKVM, sF, sNC, sC = "s50", "s51", "s52", "s53", "s54"
    dKVM, sK, sQ, sV, sT, sO = "s59", "s61", "s62", "s63", "s65", "s66"
    vKM, vVM, vF8, vCHK = "v9", "v10", "v11", "v16"
    FK, SENT, CI, KM, VM = 17, 24, 28, 36, 52
    S = [68, 76]; P = [88, 92]; MX = [100, 104]; OO = [108, 140]; OT = 172; PV2 = 12
    QF = lambda q, t: ar(8 * q + 4 * t, 4); KF = lambda q, tt: ar(32 + 8 * q + 4 * tt, 4); VF = lambda d, n=4: ar(64 + 4 * d, n)
    a(f"s_lshr_b32 {T2}, {sW}, 1\ns_lshl_b32 {hd}, {sU}, 1\ns_add_u32 {hd}, {hd}, {T2}\ns_and_b32 {ly}, {sW}, 1")
    a(f"s_lshl_b32 {T3}, {ly}, 12\ns_lshl_b32 {T0}, {hd}, 7\ns_add_u32 {T0}, {T0}, {T3}\ns_add_u32 {pOFF}, {T0}, {F_QA}\ns_add_u32 {sF}, {T0}, {T3}\ns_add_u32 {sF}, {sF}, {F_KV}")
    a(f"s_lshl_b32 {T0}, {hd}, 13\ns_lshl_b32 {T1}, {ly}, 24\ns_add_u32 {T0}, {T0}, {T1}\ns_add_u32 {bKX}, {T0}, {KX}\ns_add_u32 {bO0}, {T0}, {OB}")
    a(f"s_lshl_b32 {T0}, {hd}, 12\ns_lshl_b32 {T1}, {ly}, 21\ns_add_u32 {T0}, {T0}, {T1}\ns_add_u32 {bKVM}, {T0}, {KVM}")
    a(f"v_mov_b32 {vOUT}, v19\nv_mov_b32 v22, 0x40000000\nv_lshrrev_b32 v23, 4, v20\nv_and_b32 v21, 15, v20       ; g, m")
    a(f"v_lshlrev_b32 v18, 7, v23\nv_lshl_add_u32 v18, v21, 4, v18\nv_cmp_gt_u32 vcc, 8, v21\nv_cndmask_b32 {vKM}, v22, v18, vcc")
    a(f"v_add_u32 v18, 2048, {vL16}\nv_cmp_gt_u32 vcc, 32, v20\nv_cndmask_b32 {vVM}, v22, v18, vcc")
    a(f"v_min_u32 v18, 1, v20\nv_lshlrev_b32 {vF8}, 12, v18\nv_mov_b32 v22, 0xff800000")
    for e in range(4): a(f"v_cndmask_b32 v{CI + 4 + e}, v22, {vZ}, vcc\nv_mov_b32 v{SENT + e}, -1")
    a(f"v_lshlrev_b32 v23, 2, v23")
    for e in range(4): a(f"v_add_u32 v18, {e}, v23\nv_cmp_le_u32 vcc, v18, v21\nv_cndmask_b32 v{CI + e}, v22, {vZ}, vcc")
    c = 128 ** -0.5 * math.log2(math.e)
    a(f"s_mov_b32 {sC}, {hex(f2u(c))}\ns_mov_b32 {sNC}, {hex(f2u(-c))}\ns_mov_b32 {sB}, 0")
    pub = f"v_mov_b32 v{PV2}, {sB}\nbuffer_store_dword v{PV2}, {vZ}, {WS}, {pOFF} offen sc1"
    a(pub)
    rst = lambda s: [f"buffer_store_dwordx4 {vr(SENT, 4)}, {vL16}, {WS}, {s} offen offset:{k * 1024} sc1" for k in range(4)]
    a(f"s_mov_b32 {T0}, {bKVM}")
    for k in range(16):
        for x in rst(T0): a(x)
        a(f"s_add_u32 {T0}, {T0}, {1 << 17}")
    arrive(a)
    wait_start(a, 17); mark_start(a, diag)
    regs = list(range(KM, KM + 32))
    chk = [f"v_max3_u32 {vCHK}, v{regs[0]}, v{regs[1]}, v{regs[2]}", f"v_max_u32 {vCHK}, {vCHK}, v{regs[3]}"]
    chk += [f"v_max3_u32 {vCHK}, {vCHK}, v{regs[k]}, v{regs[k+1]}" for k in range(4, 32, 2)] + [f"v_cmp_eq_u32 vcc, -1, {vCHK}"]
    ldm = [f"buffer_load_dwordx4 {vr(KM + 4 * q, 4)}, {vKM}, {WS}, {dKVM} offen offset:{q * 512} sc1" for q in range(4)] + \
          [f"buffer_load_dwordx4 {vr(VM + 4 * q, 4)}, {vVM}, {WS}, {dKVM} offen offset:{q * 512} sc1" for q in range(4)]
    ldF = f"buffer_load_dword v{FK}, {vF8}, {WS}, {sF} offen sc1"
    fetch = []
    for base, R_ in ((sQ, 0), (sK, 32), (sV, 64)):
        for k in range(8):
            fetch.append((f"s_add_u32 {base}, {base}, 4096\n" if k == 4 else "") + f"buffer_load_dwordx4 {ar(R_ + 4 * k, 4)}, {vL16}, {WS}, {base} offen offset:{(k % 4) * 1024} sc1")
    def softmax(t):
        n = 8 + 4 * t; s = list(range(S[t], S[t] + n)); m = MX[t]; o = []
        o += [f"v_max3_f32 v{m}, v{s[0]}, v{s[1]}, v{s[2]}", f"v_max3_f32 v{m+1}, v{s[3]}, v{s[4]}, v{s[5]}", f"v_max3_f32 v{m+2 if not t else m}, v{m}, v{s[6]}, v{s[7]}"]
        if t: o += [f"v_max3_f32 v{m+1}, v{m+1}, v{s[8]}, v{s[9]}", f"v_max3_f32 v{m+2}, v{m}, v{s[10]}, v{s[11]}"]
        def cross(op):
            return [f"{op} v{m}, v{m+2}, v{m+1}", f"{op} v{m+1}, v{m+2}, v{m+1}", ('gap', 1), f"v_permlane16_swap_b32 v{m}, v{m+1}", f"{op} v{m+2}, v{m}, v{m+1}", f"{op} v{m+3}, v{m}, v{m+1}",
                    ('gap', 1), f"v_permlane32_swap_b32 v{m+2}, v{m+3}", f"{op} v{m}, v{m+2}, v{m+3}"]
        o += cross("v_max_f32") + [f"v_mul_f32 v{m}, {sNC}, v{m}"]
        o += [f"v_fma_f32 v{r}, v{r}, {sC}, v{m}" for r in s] + [f"v_exp_f32 v{r}, v{r}" for r in s]
        o += [f"v_add_f32 v{m+1}, v{s[0]}, v{s[1]}", f"v_add_f32 v{m+2}, v{s[2]}, v{s[3]}"]
        o += [f"v_add_f32 v{m + 1 + k % 2}, v{m + 1 + k % 2}, v{s[k]}" for k in range(4, n)]
        o += cross("v_add_f32") + [f"v_rcp_f32 v{m}, v{m}"]
        o += [f"v_mul_f32 v{r}, v{r}, v{m}" for r in s] + [cvt(P[t], S[t], k) for k in range(n // 2)]
        return o
    def out(t, pp):
        T = OT + 4 * (pp + 4 * t)
        return [cvt(T, OO[t] + 8 * pp, k) for k in range(4)] + [f"buffer_store_dwordx4 {vr(T, 4)}, {vOUT}, {WS}, {(sO, T3)[pp // 2]} offen offset:{(pp % 2) * 2048 + t * 256} sc1"]
    E = frozenset()
    a.label("L_AT_slow")
    a(f"s_add_u32 {sT}, {sB}, 1\ns_mov_b32 s3, 0")
    a.label("L_AT_sp")
    a(f"{ldF}\ns_waitcnt vmcnt(0)\nv_cmp_gt_u32 vcc, {sT}, v{FK}\ns_cbranch_vccz L_AT_fetch")
    spin_tail(a, "L_AT_sp", 20)
    a.label("L_AT_fetch")
    a(f"s_lshl_b32 {sO}, {sB}, 18\ns_add_u32 {sK}, {sO}, {bKX}\ns_add_u32 {sQ}, {sK}, {QX - KX}\ns_add_u32 {sV}, {sK}, {VX - KX}\ns_add_u32 {sO}, {sO}, {bO0}\ns_add_u32 {T3}, {sO}, 4096")
    a(f"s_and_b32 {dKVM}, {sB}, 15\ns_lshl_b32 {dKVM}, {dKVM}, 17\ns_add_u32 {dKVM}, {dKVM}, {bKVM}\ns_mov_b32 s3, 0")
    np_ = opt.get('at_pub', 6)
    for k, x in enumerate(fetch):
        if k == np_: a(f"s_waitcnt vmcnt({np_})\n{pub}")
        a(x)
    a.label("L_AT_km")
    for x in ldm: a(x)
    a("s_waitcnt vmcnt(0)")
    for x in chk: a(x)
    a("s_cbranch_vccz L_AT_go")
    spin_tail(a, "L_AT_km", 19)
    a.label("L_AT_go")
    trace(a, diag, sB, 0, (250, 251))
    st = Stream(a)
    def smf(t):
        M = []
        for q in range(4):
            for k in range(2 + t):
                mem = k == 1 + t
                A = vr(KM + 4 * q, 4) if mem else KF(q, k)
                C = vr(S[t] + 4 * k, 4) if q else (vr(CI + 4, 4) if mem else (vr(CI, 4) if k == t else "0"))
                M.append((f"v_mfma_f32_16x16x32_bf16 {vr(S[t] + 4 * k, 4)}, {A}, {QF(q, t)}, {C}", [], E))
        return M
    def pvf(t):
        x = lambda d: (f"v_mfma_f32_16x16x32_bf16 {vr(OO[1] + 4 * d, 4)}, {VF(d)}, {vr(P[1], 4)}, 0" if t else f"v_mfma_f32_16x16x16_bf16 {vr(OO[0] + 4 * d, 4)}, {VF(d, 2)}, {vr(P[0], 2)}, 0")
        m = lambda d: f"v_mfma_f32_16x16x16_bf16 {vr(OO[t] + 4 * d, 4)}, {vr(VM + 2 * d, 2)}, {vr(P[t] + 2 + 2 * t, 2)}, {vr(OO[t] + 4 * d, 4)}"
        seq = [x(d) for d in range(4)]
        for d in range(4): seq += [x(d + 4), m(d)]
        return [(y, [], E) for y in seq + [m(d) for d in range(4, 8)]]
    ov = lambda sl: 2
    q0 = Q([ldF, f"s_add_u32 {sT}, {sB}, 2"]); weave(st, smf(0), [q0]); flush(st, [q0])
    q0 = Q([('at', 6)] + softmax(0)); weave(st, smf(1), [q0], over=ov)
    q1 = Q(softmax(1))
    k = 0
    while q0.it:
        for q in ([q0, q0, q1] if k > 2 else [q0]):
            while q.it and isinstance(q.it[0], tuple): q.it.pop(0)
            if q.it: st.emit(q.it.pop(0))
        k += 1
    weave(st, pvf(0), [q1], over=ov); flush(st, [q1])
    q0 = Q(sum([out(0, pp) for pp in range(4)], []) + [('at', 14)] + out(1, 0)); weave(st, pvf(1), [q0], over=lambda sl: 1); flush(st, [q0])
    for pp in range(1, 4):
        for x in out(1, pp): a(x)
    for x in rst(dKVM): a(x)
    a(f"s_waitcnt vmcnt(12)\nv_cmp_gt_u32 vcc, {sT}, v{FK}\ns_add_u32 {sB}, {sB}, 1")
    trace(a, diag, sB, 1, (250, 251))
    a(f"s_cmp_eq_u32 {sB}, 64\ns_cbranch_scc1 L_AT_done\ns_cbranch_vccz L_AT_fetch")
    a(f"s_waitcnt vmcnt(0)\n{pub}\ns_branch L_AT_slow")
    a.label("L_AT_done")
    a(f"s_waitcnt vmcnt(0)\n{pub}")
    end_role(a, diag)

def ln_finish(a, X, st_xn, T, pairs=True):
    if pairs: a("v_add_f32 v8, v8, v9\nv_add_f32 v9, v10, v11")
    for r in (4, 8):
        a(f"v_add_f32_dpp v8, v8, v8 row_ror:{r} row_mask:0xf bank_mask:0xf\nv_add_f32_dpp v9, v9, v9 row_ror:{r} row_mask:0xf bank_mask:0xf")
    for sw in ("16", "32"):
        a(f"v_mov_b32 v10, v8\nv_mov_b32 v11, v9\nv_permlane{sw}_swap_b32 v8, v10\nv_permlane{sw}_swap_b32 v9, v11\nv_add_f32 v8, v8, v10\nv_add_f32 v9, v9, v11")
    inv = hex(f2u(1 / 1024))
    a(f"v_mul_f32 v8, {inv}, v8\nv_mul_f32 v9, {inv}, v9\nv_fma_f32 v9, -v8, v8, v9\nv_max_f32 v9, 0, v9\nv_add_f32 v9, {hex(f2u(1e-5))}, v9\nv_rsq_f32 v10, v9\nv_mul_f32 v8, v8, v10")
    for i in range(8):
        for k in range(4): a(f"v_pk_fma_f32 {vr(X + 8*i + 2*k, 2)}, {vr(X + 8*i + 2*k, 2)}, v[10:11], v[8:9] op_sel_hi:[1,0,0] neg_lo:[0,0,1] neg_hi:[0,0,1]")
        for k in range(4): a(cvt(T + 4 * (i % 4), X + 8*i, k))
        a(st_xn(i, T + 4 * (i % 4)))
def ln_stats(X, i):
    out = []
    for k in range(4):
        x = vr(X + 8*i + 2*k, 2)
        if i == 0 and k == 0: out += [f"v_pk_add_f32 v[8:9], {x}, 0 op_sel_hi:[1,0]", f"v_pk_mul_f32 v[10:11], {x}, {x}"]
        else: out += [f"v_pk_add_f32 v[8:9], v[8:9], {x}", f"v_pk_fma_f32 v[10:11], {x}, {x}, v[10:11]"]
    return out
def unpack(X, R, i):
    return [f"v_lshlrev_b32 v{X + 8*i + 2*k}, 16, v{R + 4*i + k}\nv_and_b32 v{X + 8*i + 2*k + 1}, 0xffff0000, v{R + 4*i + k}" for k in range(4)]

def stream_in(a, sQ, ptr, n, vaddr):
    srd(a, 52, ptr, n * 512 * 1024)
    a(f"s_lshl_b32 {T3}, {sQ}, 10")
    for k in range(n): a(f"buffer_load_dwordx4 {vr(240 + 4 * (k % 4), 4)}, {vaddr}, s[52:55], {T3} offen\ns_add_u32 {T3}, {T3}, {512 * 1024}")

def ln0(a, sQ, pf=0):
    X, R, T = 128, 192, 224
    srd(a, 8, P_X, 4 * MB)
    a(f"v_and_b32 v2, 3, v0\nv_lshlrev_b32 v2, 11, v2\nv_lshrrev_b32 v3, 2, v0\nv_lshl_add_u32 v2, v3, 4, v2\nv_lshlrev_b32 v3, 4, v0")
    a(f"s_lshl_b32 {T0}, {sQ}, 13\ns_add_u32 {T1}, {T0}, {XN}\ns_add_u32 {T2}, {T1}, 4096")
    for i in range(8): a(f"buffer_load_dwordx4 {vr(R + 4*i, 4)}, v2, s[8:11], {T0} offen offset:{i * 256}")
    if pf: stream_in(a, sQ, P_WQ, 16, "v3"); stream_in(a, sQ, P_WK, 16, "v3")
    for i in range(8):
        a(f"s_waitcnt vmcnt({7 - i + (32 if pf else 0)})")
        for x in unpack(X, R, i) + ln_stats(X, i): a(x)
    ln_finish(a, X, lambda i, r: f"buffer_store_dwordx4 {vr(r, 4)}, v3, {WS}, {(T1, T2)[i // 4]} offen offset:{(i % 4) * 1024} sc1", T)
    if pf:
        a("s_waitcnt vmcnt(24)"); stream_in(a, sQ, P_WV, 16, "v3"); stream_in(a, sQ, P_WO, 16, "v3")
    if pf > 1:
        for ptr in (P_WG, P_WU, P_WD): a("s_waitcnt vmcnt(32)"); stream_in(a, sQ, ptr, 14, "v3")
        a("s_waitcnt vmcnt(16)")

def role_LN(a, diag, opt):
    a.label("L_role_LN")
    X, R, P, T, SEL = 16, 80, 112, 208, 240
    S1, S2, ONES, DG = 224, 228, 232, 236
    vRES, vXO, vPRV, vOWN = "v6", "v7", "v4", "v5"
    sB, bP, bR, stR, bX, stX, bN, bF, fB = "s21", "s22", "s23", "s24", "s25", "s26", "s27", "s28", nFB
    a("v_mov_b32 v20, v0\nv_lshlrev_b32 v0, 4, v20\nv_mov_b32 v3, 0")
    poll_off(a, 0, 24)
    a(f"v_and_b32 v21, 3, v20\nv_lshlrev_b32 v21, 11, v21\nv_lshrrev_b32 v22, 2, v20\nv_lshl_add_u32 v21, v22, 4, v21")
    a(f"s_cmp_eq_u32 {sW}, 0\ns_cselect_b64 vcc, -1, 0\ns_cselect_b32 {stR}, 256, 0\ns_cselect_b32 {T0}, 0, 1024\ns_or_b32 {stR}, {stR}, {T0}\nv_cndmask_b32 {vRES}, {vL16}, v21, vcc")
    a(f"s_cmp_eq_u32 {sW}, 3\ns_cselect_b64 vcc, -1, 0\ns_cselect_b32 {stX}, 256, 0\ns_cselect_b32 {T0}, 0, 1024\ns_or_b32 {stX}, {stX}, {T0}\nv_cndmask_b32 {vXO}, {vL16}, v21, vcc")
    a(f"s_lshl_b32 {T3}, {sU}, 13\ns_lshl_b32 {T2}, {sW}, 22")
    a(f"s_cmp_eq_u32 {sW}, 0\ns_cselect_b32 s8, s{P_X}, s4\ns_cselect_b32 s9, s{P_X+1}, s5\ns_cselect_b32 s10, {4 * MB}, s6\ns_mov_b32 s11, 0x20000")
    a(f"s_add_u32 {bR}, {T2}, {XR - 4 * MB}\ns_cmp_eq_u32 {sW}, 0\ns_cselect_b32 {bR}, 0, {bR}\ns_add_u32 {bR}, {bR}, {T3}")
    a(f"s_cmp_eq_u32 {sW}, 3\ns_cselect_b32 s52, s{P_OUT}, s4\ns_cselect_b32 s53, s{P_OUT+1}, s5\ns_cselect_b32 s54, {4 * MB}, s6\ns_mov_b32 s55, 0x20000")
    a(f"s_add_u32 {bX}, {T2}, {XR}\ns_cmp_eq_u32 {sW}, 3\ns_cselect_b32 {bX}, 0, {bX}\ns_add_u32 {bX}, {bX}, {T3}")
    a(f"s_add_u32 {bN}, {T2}, {XN + 4 * MB}\ns_add_u32 {bN}, {bN}, {T3}")
    a(f"s_lshl_b32 {T0}, {sW}, 10\ns_lshl_b32 {T1}, {sU}, 7\ns_add_u32 {bF}, {T0}, {T1}\ns_add_u32 {bF}, {bF}, {F_LN}")
    a(f"s_and_b32 {T0}, {sW}, 1\ns_lshr_b32 {T1}, {sW}, 1\ns_mul_i32 {bP}, {T0}, {PD - PW}\ns_mul_i32 {fB}, {T1}, {12 * MB}\ns_add_u32 {bP}, {bP}, {fB}\ns_add_u32 {bP}, {bP}, {PW}\ns_add_u32 {bP}, {bP}, {T3}")
    a(f"s_mul_i32 {fB}, {T0}, {F_DN - F_WO}\ns_lshl_b32 {T1}, {T1}, 12\ns_add_u32 {fB}, {fB}, {T1}\ns_add_u32 {fB}, {fB}, {F_WO}")
    for k in range(6): a(f"v_mov_b32 v{SEL + k}, 0")
    a(f"s_mov_b32 {T0}, 0x3f80\ns_mov_b32 {T1}, 0x3f800000")
    for g in range(4):
        for e in range(4): a(f"v_writelane_b32 v{SEL + 2 + e // 2}, {T1 if e % 2 else T0}, {20*g + e}")
    SL = [vr(SEL + 2, 4), vr(SEL, 4)]
    for k in range(4): a(f"v_mov_b32 v{ONES + k}, 0x3f803f80\nv_mov_b32 v{DG + k}, 0")
    for g in range(4):
        for e in range(4): a(f"v_writelane_b32 v{DG + e}, {T1}, {20*g + e}")
    a(f"s_lshl_b32 {T0}, {sW}, 2\nv_mov_b32 {vPRV}, {T0}\nv_add_u32 {vOWN}, 4, {vPRV}\nv_mov_b32 v8, 64\nds_write_b32 {vOWN}, {vZ}\nds_write_b32 {vZ}, v8\ns_waitcnt lgkmcnt(0)")
    a(f"buffer_store_dword {vZ}, {vZ}, {WS}, {bF} offen sc1")
    arrive(a)
    wait_start(a, 21); mark_start(a, diag)
    a(f"s_mov_b32 {sB}, 0")
    a.label("L_LN_loop")
    a(f"s_add_u32 {nTHR}, {sB}, 1\ns_mov_b32 s3, 0")
    a.label("L_LN_rs")
    a(f"ds_read_b32 v8, {vPRV}\ns_waitcnt lgkmcnt(0)\nv_cmp_gt_u32 vcc, {nTHR}, v8\ns_cbranch_vccz L_LN_rg\ns_sleep 2")
    spin_tail(a, "L_LN_rs", 23)
    a.label("L_LN_rg")
    a(f"s_lshl_b32 {T3}, {sB}, 16\ns_add_u32 {T0}, {T3}, {bR}\ns_mul_i32 {T1}, {sB}, {192 * 1024}\ns_add_u32 {T1}, {T1}, {bP}")
    for i in range(8): a(f"buffer_load_dwordx4 {vr(P + 4*i, 4)}, {vRES}, s[8:11], {T0} offen sc1\ns_add_u32 {T0}, {T0}, {stR}")
    a(POLL)
    for j in range(3):
        for hf in range(2): a(f"s_add_u32 s{34 + 2*j + hf}, {T1}, {j * 65536 + hf * 4096}")
    a(f"s_add_u32 {T0}, {T3}, {bX}\ns_add_u32 {T1}, {T3}, {bN}\ns_add_u32 {T2}, {T1}, 4096\ns_mov_b32 s3, 0")
    a(f"s_waitcnt vmcnt(8)\nv_mov_b32 v8, {sB}\nds_write_b32 {vOWN}, v8")
    for i in range(8):
        a(f"s_waitcnt vmcnt({8 - i})")
        for x in unpack(X, P, i): a(x)
    a(f"s_waitcnt vmcnt(0)\n{PCHK}\ns_cbranch_vccz L_LN_go")
    a.label("L_LN_sp")
    a(f"{POLL}\ns_waitcnt vmcnt(0)\n{PCHK}\ns_cbranch_vccz L_LN_go")
    spin_tail(a, "L_LN_sp", 22)
    a.label("L_LN_go")
    trace(a, diag, sB, 0, (250, 251))
    for i in range(8):
        for j in range(3): a(f"buffer_load_dwordx4 {vr(P + 12*i + 4*j, 4)}, {vL16}, {WS}, s{34 + 2*j + i // 4} offen offset:{(i % 4) * 1024} sc1")
    stat = lambda i: [f"v_mfma_f32_16x16x32_bf16 {vr(S1, 4)}, {vr(ONES, 4)}, {vr(R + 4*i, 4)}, {vr(S1, 4) if i else '0'}",
                      f"v_mfma_f32_16x16x32_bf16 {vr(S2, 4)}, {vr(R + 4*i, 4)}, {vr(R + 4*i, 4)}, {vr(S2, 4) if i else '0'}"]
    for i in range(8):
        fl = [cvt(R + 4*(i - 1), X + 8*(i - 1), k) for k in range(4)] if i else []
        for j in range(3):
            a(f"s_waitcnt vmcnt({23 - 3*i - j})")
            for u in range(2):
                acc = vr(X + 8*i + 4*u, 4)
                a(f"v_mfma_f32_16x16x32_bf16 {acc}, {SL[u]}, {vr(P + 12*i + 4*j, 4)}, {acc}")
                if j == 2 and fl: a(fl.pop(0)); a(fl.pop(0))
        if i >= 2:
            for x in stat(i - 2): a(x)
    for x in stat(6) + [cvt(R + 28, X + 56, k) for k in range(4)]: a(x)
    stx = [f"buffer_store_dwordx4 {vr(R + 4*i, 4)}, {vXO}, s[52:55], {T0} offen sc1\ns_add_u32 {T0}, {T0}, {stX}" for i in range(8)]
    a(f"s_add_u32 {sB}, {sB}, 1\ns_cmp_eq_u32 {sW}, 3\ns_cbranch_scc1 L_LN_out")
    for x in stat(7): a(x)
    a(f"v_mov_b32 v{PR + 1}, {sB}")
    a(f"v_mul_f32 v8, {hex(f2u(0.25))}, v{S1}")
    a(f"v_mul_f32 v9, v{DG}, v{S2}")
    for k in range(1, 4): a(f"v_fmac_f32 v9, v{DG + k}, v{S2 + k}")
    ln_finish(a, X, lambda i, r: f"buffer_store_dwordx4 {vr(r, 4)}, {vL16}, {WS}, {(T1, T2)[i // 4]} offen offset:{(i % 4) * 1024} sc1", T, pairs=False)
    for x in stx[:4]: a(x)
    a(f"s_waitcnt vmcnt(4)\nbuffer_store_dword v{PR + 1}, {vZ}, {WS}, {bF} offen sc1")
    for x in stx[4:]: a(x)
    a("s_branch L_LN_nx")
    a.label("L_LN_out")
    for x in stx: a(x)
    a.label("L_LN_nx")
    trace(a, diag, sB, 1, (250, 251))
    a(f"s_cmp_lt_u32 {sB}, 64\ns_cbranch_scc1 L_LN_loop")
    a(f"s_waitcnt vmcnt(0)\nv_mov_b32 v8, {sB}\nds_write_b32 {vOWN}, v8\ns_waitcnt lgkmcnt(0)")
    end_role(a, diag)
```

```python
from asmgen import *
from layout import *
from weave import *
import math

SPIN = 40000
WS = "s[4:7]"; DBG = "s[12:15]"
sXC, sSLOT, sW = "s16", "s17", "s18"
P_X, P_MEM0, P_WQ, P_WK, P_WV, P_WO, P_WG, P_WU, P_WD, P_OUT = 64, 66, 68, 70, 72, 74, 80, 82, 84, 86

def srd(a, d, ptr, nbytes):
    a(f"s_mov_b32 s{d}, s{ptr}\ns_mov_b32 s{d+1}, s{ptr+1}\ns_mov_b32 s{d+2}, {nbytes}\ns_mov_b32 s{d+3}, 0x20000")

def probe_near(a, dst):
    a("s_waitcnt vmcnt(0)\ns_barrier\nv_mov_b32 v21, 0\ns_mov_b32 s94, -1\ns_mov_b32 s95, -1")
    sk = a.uniq("L_pr")
    a(f"s_cmp_lg_u32 {sW}, 0\ns_cbranch_scc1 {sk}")
    for k in range(12):
        l = a.uniq("L_pl"); c = k % 2
        a(f"s_mov_b32 s92, {PROBE + c * 8192 + (k // 2 % 2) * 4096}\ns_mov_b32 s3, 0\nbuffer_store_dword v21, v21, {WS}, s92 offen sc1")
        a.label(l)
        a(f"s_add_u32 s3, s3, 1\ns_getreg_b32 s93, hwreg(HW_REG_IB_STS, 0, 4)\ns_cmp_lt_u32 s3, 4096\ns_cselect_b32 s93, s93, 0\ns_cmp_lg_u32 s93, 0\ns_cbranch_scc1 {l}")
        a(f"s_waitcnt vmcnt(0)\ns_min_u32 s{94 + c}, s{94 + c}, s3")
    a.label(sk)
    a(f"s_cmp_lt_u32 s95, s94\ns_cselect_b32 {dst}, 0x10001, 1")

def arrive(a, val="1"):
    l = a.uniq("L_arr")
    a(f"s_waitcnt vmcnt(0)\ns_barrier\ns_cmp_lg_u32 {sW}, 0\ns_cbranch_scc1 {l}")
    a(f"s_mov_b64 exec, 1\nv_mov_b32 v20, {val}\nv_mov_b32 v21, 4\nbuffer_atomic_add v20, v21, {DBG}, 0 offen\ns_mov_b64 exec, -1")
    a.label(l)

def wait_start(a, code):
    l = a.uniq("L_ws"); d = a.uniq("L_wsd")
    a("s_mov_b32 s3, 0\nv_mov_b32 v21, 4")
    a.label(l)
    a(f"buffer_load_dword v20, v21, {DBG}, 0 offen sc1\ns_waitcnt vmcnt(0)\nv_and_b32 v22, 0xffff, v20\nv_cmp_gt_u32 vcc, 256, v22\ns_cbranch_vccz {d}")
    spin_tail(a, l, code)
    a.label(d)

def spin_tail(a, loop, code):
    a(f"s_add_u32 s3, s3, 1\ns_cmp_lt_u32 s3, {SPIN}\ns_cbranch_scc1 {loop}\ns_mov_b32 s3, {code}\ns_branch L_abort")

def trace(a, diag, idx, slot, vt=(126, 127)):
    if diag != 2: return
    a(f"s_memrealtime s[100:101]\ns_lshl_b32 s99, {idx}, 4\ns_add_u32 s99, s99, s91\ns_waitcnt lgkmcnt(0)\ns_sub_u32 s100, s100, s90")
    a(f"v_mov_b32 v{vt[0]}, s100\nv_mov_b32 v{vt[1]}, 0\nbuffer_store_dword v{vt[0]}, v{vt[1]}, {WS}, s99 offen offset:{slot * 4}")

def role_R(a, D, diag=False, sel=0, stamps=False, opt=None):
    opt = opt or {}
    def stamp(k):
        if stamps and stamps is not True:
            a(f"s_memrealtime s[80:81]\ns_cmp_eq_u32 s21, {stamps + (1 if k >= 13 else 0)}\ns_waitcnt lgkmcnt(0)\ns_cselect_b32 s{64+k}, s80, s{64+k}")
        elif stamps: a(f"s_memtime s[80:81]\ns_waitcnt lgkmcnt(0)\ns_sub_u32 s83, s80, s82\ns_add_u32 s{64+k}, s{64+k}, s83\ns_mov_b32 s82, s80")
    gx, i, w = sXC, sSLOT, sW
    j, h, n = "s19", "s20", "s21"
    bX1Lc, bX1Rc, bX1Lp, bX1Rp, bX2s, bX2sv, bX2r, bX2rv, bX3p, bX3c = [f"s{k}" for k in range(22, 32)]
    dX1Lc, dX1Rc, dX1Lp, dX1Rp, dX1Rq, dX2s, dX2sv, dX2r, dX2rv, dX3p, dX3c, dKX, dVX, dKVM, dFLG, dTHR = [f"s{k}" for k in range(32, 48)]
    rX2s, rX2sv, rX3p, rX1L, rX1R, rX1Rq, pFLG, pVAL = [f"s{k}" for k in range(48, 56)]
    mOWN32 = "s[56:57]"; mINJ = "s[58:59]"
    sLO, sHI, sNC, bKV = "s60", "s61", "s62", "s63"
    sCC = "s[8:9]"; mOWN16 = "s[10:11]"; sROT = ["s84", "s85", "s86", "s87"]; qFLG = dFLG; qKVM, qX1Rq, qVAL = "s88", "s89", "s2"
    t0, t1, t2, t3 = "s92", "s93", "s94", "s95"
    bFR, bFKV = "s96", "s97"
    vL16, vX1P, vKS, vQS, vVS, vOP, vKMP, vVMP, vX3C, vWO = [f"v{k}" for k in range(0, 10)]
    vROT = ["v10", "v11", "v12", "v13"]
    vNINF, vSPARE, vRED, vM0, vFO, vCHK = [f"v{k}" for k in range(14, 20)]
    OWN, RING, AQ, AK, AV, KXR, VXR, TMP, SM = 20, 36, 52, 60, 68, 76, 108, 116, 124
    KEEP = RING
    a.label("L_role_R")
    a(f"s_and_b32 {j}, {i}, 1\ns_lshr_b32 {h}, {i}, 1\ns_lshl_b32 {t0}, {gx}, 4\ns_add_u32 {h}, {h}, {t0}")
    a("v_mov_b32 v20, v0                ; lane")
    a(f"v_lshlrev_b32 {vL16}, 4, v20")
    a(f"s_lshl_b32 {t0}, {w}, 8\nv_lshl_add_u32 {vX1P}, v20, 2, {t0}")
    a(f"v_bfe_u32 v21, v20, 3, 1\nv_cmp_eq_u32 s[92:93], {j}, v21      ; own16")
    a(f"v_lshrrev_b32 v21, 5, v20\nv_cmp_eq_u32 {mOWN32}, {j}, v21")
    a(f"v_mov_b32 v22, 0x40000000")
    a(f"v_cndmask_b32 {vKS}, {vL16}, v22, s[92:93]")
    a(f"v_xor_b32 v23, 128, {vL16}\nv_cndmask_b32 {vQS}, v23, v22, s[92:93]")
    a(f"v_and_b32 v24, 0x1f0, {vL16}\nv_cndmask_b32 {vVS}, v24, v22, {mOWN32}\nv_cndmask_b32 {vVMP}, v22, v24, {mOWN32}")
    a(f"v_lshrrev_b32 v25, 4, v20\nv_lshlrev_b32 v25, 7, v25\nv_and_b32 v26, 7, v20\nv_lshl_add_u32 v25, v26, 4, v25     ; g*128+(n&7)*16")
    a(f"v_cndmask_b32 {vOP}, v25, v22, s[92:93]\nv_cndmask_b32 {vKMP}, v22, v25, s[92:93]")
    a(f"v_bfe_u32 v21, v20, 3, 1\nv_lshl_add_u32 {vX3C}, v21, 9, v25")
    a(f"s_lshl_b32 {t2}, {w}, 15\ns_add_u32 {t2}, {t2}, 0x8000\nv_add_u32 {vWO}, {t2}, {vL16}")
    for q in range(4):
        a(f"s_add_u32 {t2}, {w}, {q}\ns_and_b32 {t2}, {t2}, 3\ns_lshl_b32 {sROT[q]}, {t2}, 11\ns_lshl_b32 {t2}, {t2}, 13\nv_add_u32 {vROT[q]}, {t2}, {vL16}")
    a(f"v_mov_b32 {vNINF}, 0xff800000\nv_and_b32 v21, 15, v20\nv_lshlrev_b32 v21, 7, v21\nv_bfe_u32 v22, v20, 4, 1\nv_lshl_add_u32 {vSPARE}, v22, 25, v21")
    a(f"v_lshrrev_b32 v21, 2, v20\nv_lshlrev_b32 v21, 4, v21\nv_bfe_u32 v22, v20, 1, 1\nv_lshl_add_u32 v21, v22, 10, v21\nv_and_b32 v22, 1, v20\nv_lshl_add_u32 v21, v22, 3, v21")
    a(f"s_lshl_b32 {t2}, {w}, 8\nv_add_u32 {vRED}, {t2}, v21")
    a(f"v_min_u32 v21, 1, v20\nv_lshlrev_b32 {vFO}, 12, v21")
    a(f"s_mov_b32 {sLO}, 0x00003f80\ns_mov_b32 {sHI}, 0x3f800000\ns_mov_b32 {sNC}, {hex(f2u(-(128 ** -0.5) * math.log2(math.e)))}")
    srd(a, 8, P_MEM0, 16384)
    a(f"v_bfe_u32 v21, v20, 2, 3\nv_lshlrev_b32 v21, 11, v21\nv_and_b32 v22, 3, v20\nv_lshl_add_u32 v21, v22, 2, v21")
    a(f"s_lshl_b32 {t2}, {i}, 6\ns_lshl_b32 {t3}, {w}, 4\ns_add_u32 {t2}, {t2}, {t3}\ns_cmp_eq_u32 {gx}, 0\ns_cselect_b32 {t2}, {t2}, 0x100000")
    a(f"buffer_load_dword {vM0}, v21, s[8:11], {t2} offen")
    def phys(dst, src):
        a(f"s_lshr_b32 {t3}, {src}, 13\ns_lshl_b32 {t3}, {t3}, 14\ns_and_b32 {dst}, {src}, 8191\ns_add_u32 {dst}, {dst}, {t3}")
    a(f"s_lshl_b32 {t0}, {j}, 14\ns_lshl_b32 {t1}, {w}, 12\ns_add_u32 {t0}, {t0}, {t1}      ; (16j+4w)K")
    a(f"s_lshl_b32 {t1}, {gx}, 15\ns_add_u32 {bX1Lc}, {t0}, {t1}\ns_add_u32 {bX1Lc}, {bX1Lc}, {X1L}")
    a(f"s_xor_b32 {t2}, {t1}, 0x8000\ns_add_u32 {t2}, {t2}, {t0}")
    phys(bX1Rc, t2); a(f"s_add_u32 {bX1Rc}, {bX1Rc}, {X1R + (sel or 0) * 8192}")
    a(f"s_lshl_b32 {t0}, {i}, 10\ns_add_u32 {t2}, {t0}, {t1}\ns_add_u32 {bX1Lp}, {t2}, {X1L}")
    phys(bX1Rp, t2); a(f"s_add_u32 {bX1Rp}, {bX1Rp}, {X1R + (sel or 0) * 8192}")
    a(f"s_lshl_b32 {t0}, {h}, 1\ns_add_u32 {t0}, {t0}, {j}\ns_lshl_b32 {t0}, {t0}, 13\ns_add_u32 {bX2r}, {t0}, {X2}")
    a(f"s_lshl_b32 {t1}, {w}, 9\ns_add_u32 {t1}, {t1}, 4096\ns_add_u32 {bX2rv}, {bX2r}, {t1}")
    a(f"s_xor_b32 {t0}, {bX2r}, 0x2000\ns_add_u32 {bX2sv}, {t0}, {t1}\ns_lshl_b32 {t1}, {w}, 10\ns_add_u32 {bX2s}, {t0}, {t1}\ns_add_u32 {bX2r}, {bX2r}, {t1}")
    a(f"s_lshl_b32 {t0}, {h}, 12\ns_add_u32 {t0}, {t0}, {t1}\ns_lshl_b32 {t1}, {j}, 9\ns_add_u32 {t0}, {t0}, {t1}\ns_add_u32 {bX3p}, {t0}, {X3}")
    a(f"s_lshl_b32 {t0}, {gx}, 16\ns_lshl_b32 {t1}, {w}, 14\ns_add_u32 {t0}, {t0}, {t1}\ns_add_u32 {bX3c}, {t0}, {X3}")
    a(f"s_lshl_b32 {t0}, {j}, 11\ns_add_u32 {bKV}, {t0}, {h}         ; j*2048+h")
    a(f"s_lshl_b32 {t0}, {j}, 10\ns_lshl_b32 {t1}, {h}, 4\ns_add_u32 {t0}, {t0}, {t1}\ns_lshl_b32 {bFKV}, {t0}, 3\ns_add_u32 {bFKV}, {bFKV}, {F_KV}")
    a(f"s_lshl_b32 {t0}, {j}, 9\ns_add_u32 {t0}, {t0}, {h}\ns_lshl_b32 {t0}, {t0}, 12\ns_lshl_b32 {t1}, {w}, 9\ns_add_u32 {t0}, {t0}, {t1}\ns_add_u32 {bFR}, {t0}, {KVM}")
    a("v_mov_b32 v24, -1\nv_mov_b32 v25, -1\nv_mov_b32 v26, -1\nv_mov_b32 v27, -1\nv_mov_b32 v28, 0\nv_mov_b32 v29, 0")
    for sl in range(4):
        a(f"s_add_u32 {t0}, {bX1Lp}, {sl << 16}\nbuffer_store_dword v24, {vX1P}, {WS}, {t0} offen")
        a(f"s_add_u32 {t0}, {bX1Rp}, {sl << 17}\nbuffer_store_dword v24, {vX1P}, {WS}, {t0} offen sc1")
        a(f"s_xor_b32 {t0}, {t0}, 8192\nbuffer_store_dword v24, {vX1P}, {WS}, {t0} offen sc1")
        a(f"s_add_u32 {t0}, {bX2s}, {sl << 19}\nbuffer_store_dwordx4 v[24:27], {vL16}, {WS}, {t0} offen")
        a(f"s_add_u32 {t0}, {bX2sv}, {sl << 19}\nbuffer_store_dwordx4 v[24:27], {vVS}, {WS}, {t0} offen")
        a(f"s_add_u32 {t0}, {bX3p}, {sl << 17}\nbuffer_store_dwordx4 v[24:27], {vOP}, {WS}, {t0} offen")
    a("v_mov_b32 v30, v20")
    arrive(a)
    srd(a, 8, P_WQ, 8 * MB); srd(a, 32, P_WK, 8 * MB); srd(a, 36, P_WV, 8 * MB); srd(a, 40, P_WO, 8 * MB)
    S = ["s[8:11]", "s[32:35]", "s[36:39]", "s[40:43]"]
    vDA, vDO, vTA, vTV, vTO = "v31", "v32", "v33", "v34", "v35"
    a(f"v_lshrrev_b32 v21, 2, v30\nv_and_b32 v22, 3, v30\nv_lshlrev_b32 v23, 4, v22\nv_lshl_add_u32 {vDA}, v21, 13, v23\nv_lshl_add_u32 {vDO}, v21, 11, v23")
    a(f"s_lshl_b32 s44, {w}, 15\ns_add_u32 s44, s44, 0x8000")
    a(f"v_lshrrev_b32 v24, 4, v30\nv_bfe_u32 v25, v30, 2, 2\nv_lshlrev_b32 v25, 6, v25\nv_add_u32 v25, s44, v25")
    a(f"v_lshl_add_u32 v26, v24, 9, v25\nv_add_u32 {vTA}, v26, v23\nv_lshl_add_u32 {vTV}, v22, 3, v26")
    a(f"v_lshl_add_u32 v26, v24, 8, v25\nv_add_u32 {vTO}, v26, v23")
    a(f"s_lshl_b32 s45, {j}, 22\ns_lshl_b32 {t0}, {h}, 8\ns_add_u32 s45, s45, {t0}\ns_lshl_b32 {t0}, {w}, 6\ns_add_u32 s45, s45, {t0}")
    a(f"s_lshl_b32 s46, {gx}, 22\ns_lshl_b32 {t0}, {w}, 20\ns_add_u32 s46, s46, {t0}\ns_lshl_b32 {t0}, {i}, 6\ns_add_u32 s46, s46, {t0}")
    a(f"s_lshl_b32 s47, {w}, 2")
    def dma(B):
        m, p = divmod(B, 16)
        if m < 3:
            a(f"s_add_u32 {t0}, s47, {p}\ns_and_b32 {t0}, {t0}, 15\ns_lshl_b32 {t0}, {t0}, 18\ns_add_u32 {t0}, {t0}, s45\ns_add_u32 {t1}, {t0}, {16 * 8192}")
        else:
            a(f"s_add_u32 {t0}, s46, {p * 32 * 2048}\ns_add_u32 {t1}, {t0}, {16 * 2048}")
        v = vDA if m < 3 else vDO
        a(f"s_add_u32 m0, s44, {p * 2048}\nbuffer_load_dwordx4 {v}, {S[m]}, {t0} offen{opt.get('pol_R', '')} lds")
        a(f"s_add_u32 m0, s44, {p * 2048 + 1024}\nbuffer_load_dwordx4 {v}, {S[m]}, {t1} offen{opt.get('pol_R', '')} lds")
    def W(m, p, t):
        r = ((m * 16 + p) * 2 + t) * 4
        return ("a", r) if r < 256 else ("v", r - 128)
    for B in range(16): dma(B)
    for B in range(64):
        m, p = divmod(B, 16)
        a(f"s_waitcnt vmcnt({min(30, 2 * (63 - B))})")
        for t in range(2):
            for u in range(2):
                if m < 3:
                    f, r = W(m, p, t)
                    a(f"ds_read_b64_tr_b16 {vr(r + 2 * u, 2, f)}, {vTA if m < 2 else vTV} offset:{p * 2048 + u * 256 + t * (8 if m < 2 else 32)}")
                else:
                    a(f"ds_read_b64_tr_b16 {vr(40 + 4 * t + 2 * u, 2)}, {vTO} offset:{p * 2048 + u * 1024 + t * 8}")
        a("s_waitcnt lgkmcnt(0)")
        if m < 3: dma(B + 16)
        else: a(f"ds_write_b128 {vWO}, v[40:43] offset:{p * 2048}\nds_write_b128 {vWO}, v[44:47] offset:{p * 2048 + 1024}\ns_waitcnt lgkmcnt(0)")
    Wr = lambda m, p, t: vr(W(m, p, t)[1], 4, W(m, p, t)[0])
    wait_start(a, 1)
    if sel is None: a(f"v_readfirstlane_b32 {t0}, v20\ns_lshr_b32 {t0}, {t0}, 16\ns_and_b32 {t0}, {t0}, 1\ns_lshl_b32 {t0}, {t0}, 13\ns_add_u32 {bX1Rc}, {bX1Rc}, {t0}\ns_add_u32 {bX1Rp}, {bX1Rp}, {t0}")
    if diag: a("s_memrealtime s[98:99]\ns_waitcnt lgkmcnt(0)\ns_mov_b32 s100, 0\ns_mov_b32 s101, 0")
    if stamps:
        for k in range(16): a(f"s_mov_b32 s{64+k}, 0")
        a("s_memtime s[80:81]\ns_waitcnt lgkmcnt(0)\ns_mov_b32 s82, s80")
    ldF = f"buffer_load_dword {vSPARE}, {vFO}, {WS}, {bFKV} offen sc1"
    a(ldF + "\ns_waitcnt vmcnt(0)")
    a(f"v_min_u32 {vM0}, -2, {vM0}\ns_mov_b32 {n}, 0\ns_mov_b32 {qKVM}, {OOB}")
    a(f"s_mov_b32 s8, {hex(f2u(128 ** -0.5 * math.log2(math.e)))}\ns_mov_b32 s9, s8\ns_cmp_eq_u32 {j}, 0\ns_cselect_b32 s10, 0x00ff00ff, 0\ns_cselect_b32 s11, 0, 0xff00ff00\ns_or_b32 s10, s10, s11\ns_mov_b32 s11, s10")
    a(f"v_mov_b32 v40, 0\nv_mov_b32 v41, 0")
    for g in range(4):
        for e in range(4): a(f"v_writelane_b32 v{40 + e // 2}, {sHI if e % 2 else sLO}, {20*g + e}")
    a(f"ds_write_b64 {vROT[0]}, v[40:41] offset:5120\ns_lshl_b32 {t0}, {w}, 13\ns_add_u32 m0, {t0}, 6144\ns_waitcnt lgkmcnt(0)")
    a(f"buffer_store_dword {vM0}, {vX1P}, {WS}, {bX1Lp} offen\nbuffer_store_dword {vM0}, {vX1P}, {WS}, {bX1Rp} offen sc1")
    def chk(regs, first):
        k = 0
        if first: a(f"v_max3_u32 {vCHK}, v{regs[0]}, v{regs[1]}, v{regs[2]}\nv_max_u32 {vCHK}, {vCHK}, v{regs[3]}"); k = 4
        while k < len(regs): a(f"v_max3_u32 {vCHK}, {vCHK}, v{regs[k]}, v{regs[k+1]}"); k += 2
    rng = lambda b, c: list(range(b, b + c))
    retries = []
    def cnt(bit):
        return f"s_add_u32 s{100 + bit // 2}, s{100 + bit // 2}, {1 << (16 * (bit % 2))}\n" if diag == 1 else ""
    def branch_retry(loads, back, code, bit):
        l = a.uniq("L_rt")
        a(f"v_cmp_eq_u32 vcc, -1, {vCHK}\ns_cbranch_vccnz {l}")
        retries.append((l, cnt(bit) + loads, back, code))
    a.label("L_R_step")
    bk0 = f"s_and_b32 {t0}, {n}, 3\ns_lshl_b32 {t1}, {t0}, 16\ns_add_u32 {dX1Lc}, {bX1Lc}, {t1}\ns_xor_b32 {t1}, {t1}, 0x20000\ns_add_u32 {rX1L}, {bX1Lp}, {t1}\ns_mov_b32 s3, 0"
    bk0 += f"\ns_lshl_b32 {t1}, {t0}, 17\ns_add_u32 {dX1Rc}, {bX1Rc}, {t1}\ns_add_u32 {dX3p}, {bX3p}, {t1}\ns_add_u32 {dX3c}, {bX3c}, {t1}"
    bk0 += f"\ns_xor_b32 {t1}, {t1}, 0x40000\ns_add_u32 {rX1R}, {bX1Rp}, {t1}\ns_add_u32 {rX3p}, {bX3p}, {t1}"
    bk1 = f"s_lshl_b32 {t1}, {t0}, 19\ns_add_u32 {dX2s}, {bX2s}, {t1}\ns_add_u32 {dX2sv}, {bX2sv}, {t1}\ns_add_u32 {dX2r}, {bX2r}, {t1}\ns_add_u32 {dX2rv}, {bX2rv}, {t1}"
    bk1 += f"\ns_xor_b32 {t1}, {t1}, 0x100000\ns_add_u32 {rX2s}, {bX2s}, {t1}\ns_add_u32 {rX2sv}, {bX2sv}, {t1}"
    bk1 += f"\ns_add_u32 {t0}, {n}, 1\ns_and_b32 {t0}, {t0}, 3\ns_lshl_b32 {t1}, {t0}, 16\ns_add_u32 {dX1Lp}, {bX1Lp}, {t1}\ns_lshl_b32 {t1}, {t0}, 17\ns_add_u32 {dX1Rp}, {bX1Rp}, {t1}"
    bk1 += f"\ns_cmp_eq_u32 {n}, {D-1}\ns_cselect_b32 s59, -1, 0\ns_mov_b32 s58, 0"
    bk2 = f"s_mul_i32 {t0}, {j}, {D}\ns_sub_u32 {t0}, {n}, {t0}\ns_add_u32 {pVAL}, {t0}, 1\ns_lshl_b32 {t1}, {t0}, 5\ns_add_u32 {t1}, {t1}, {bKV}"
    bk2 += f"\ns_lshl_b32 {t2}, {t1}, 13\ns_add_u32 {t2}, {t2}, {sROT[0]}\ns_add_u32 {dKX}, {t2}, {KX}\ns_add_u32 {dVX}, {t2}, {VX}"
    bk2 += f"\ns_and_b32 {t2}, {t0}, 15\ns_lshl_b32 {t2}, {t2}, 17\ns_add_u32 {dKVM}, {t2}, {bFR}"
    bk2 += f"\ns_cmp_lt_u32 {t0}, 64\ns_cselect_b32 {dKX}, {dKX}, {OOB}\ns_cselect_b32 {dVX}, {dVX}, {OOB}\ns_cselect_b32 {dKVM}, {dKVM}, {OOB}\ns_cselect_b32 {dTHR}, {pVAL}, 0"
    if opt.get('fixkx'): bk2 += f"\ns_lshl_b32 {t2}, {bKV}, 13\ns_add_u32 {t2}, {t2}, {sROT[0]}\ns_add_u32 {dKX}, {t2}, {KX}\ns_add_u32 {dVX}, {t2}, {VX}"
    a(bk0)
    ldL = "\n".join(f"buffer_load_dwordx4 {vr(OWN + 4*p, 4)}, {vL16}, {WS}, {dX1Lc} offen offset:{p*1024} sc1" for p in range(4))
    ldR = "\n".join(f"buffer_load_dwordx4 {vr(RING + 4*p, 4)}, {vL16}, {WS}, {dX1Rc} offen offset:{p*1024} sc1" for p in range(4))
    def cvt(T, A, k): return f"v_cvt_pk_bf16_f32 v{T + k}, v{A + 2*k}, v{A + 2*k + 1}"
    def chkl(regs, first):
        out = []; k = 0
        if first: out += [f"v_max3_u32 {vCHK}, v{regs[0]}, v{regs[1]}, v{regs[2]}", f"v_max_u32 {vCHK}, {vCHK}, v{regs[3]}"]; k = 4
        while k < len(regs): out.append(f"v_max3_u32 {vCHK}, {vCHK}, v{regs[k]}, v{regs[k+1]}"); k += 2
        return out
    CMP = f"v_cmp_eq_u32 vcc, -1, {vCHK}"
    def br(loads, back, code, bit):
        l = a.uniq("L_rt"); a(f"s_cbranch_vccnz {l}"); retries.append((l, cnt(bit) + loads, back, code))
    SEL = [vr(VXR + 2, 4), vr(VXR, 4)]
    ACC = KXR
    a(f"ds_read_b64 {vr(VXR + 2, 2)}, {vROT[0]} offset:5120")
    a(f"v_mov_b32 v{VXR}, 0\nv_mov_b32 v{VXR+1}, 0\nv_mov_b32 v{VXR+4}, 0\nv_mov_b32 v{VXR+5}, 0")
    a(f"s_waitcnt vmcnt({opt.get('wL', 1)})")
    for _ in range(opt.get('dL', 0)): a("s_nop 15")
    stamp(0)
    a(ldL); a(bk1)
    early = opt.get('earlyR', 0)
    a("s_waitcnt lgkmcnt(0)")
    if early:
        a("s_waitcnt vmcnt(4)")
        for _ in range(opt.get('dR', 0)): a("s_nop 15")
        a(ldR)
    a.label("L_R_x1l")
    for p in range(4):
        a(f"s_waitcnt vmcnt({3 - p + (4 if early else 0)})")
        c = chkl(rng(OWN + 4*p, 4), p == 0)
        if p == 3: a(c[0]); a(c[1]); a(CMP); c = ["", ""]
        for u in range(2):
            a(f"v_mfma_f32_16x16x32_bf16 {vr(ACC + 8*p + 4*u, 4)}, {SEL[u]}, {vr(OWN + 4*p, 4)}, 0")
            if c[u]: a(c[u])
    br(ldL, "L_R_x1l", 2, 0)
    stamp(1)
    if not early:
        for _ in range(opt.get('dR', 0)): a("s_nop 15")
        a(ldR)
    a(bk2)
    a.label("L_R_kvf")
    a(f"v_cmp_gt_u32 vcc, {dTHR}, {vSPARE}"); br(ldF, "L_R_kvf", 3, 0)
    stamp(2)
    a.label("L_R_x1r")
    TT = [AQ, AK, AV, TMP]
    wrs = lambda p: [cvt(OWN + 4*p, TT[p], k) for k in range(4)] + [f"ds_write_b128 {vROT[0]}, {vr(OWN + 4*p, 4)} offset:{p*1024}"]
    for p in range(4):
        a(f"s_waitcnt vmcnt({3 - p})")
        for u in range(2):
            a(f"v_mfma_f32_16x16x32_bf16 {vr(TT[p] + 4*u, 4)}, {SEL[u]}, {vr(RING + 4*p, 4)}, {vr(ACC + 8*p + 4*u, 4)}")
        for x in chkl(rng(RING + 4*p, 4), p == 0): a(x)
        if p == 3: a(CMP)
        if p > 0:
            for x in wrs(p - 1): a(x)
    br(ldR, "L_R_x1r", 4, 1)
    for x in wrs(3): a(x)
    stamp(3)
    fr = lambda p: vr(OWN + 4*p, 4) if p < 4 else vr(RING + 4*(p % 4), 4)
    rd = lambda p: f"ds_read_b128 {vr(RING + 4*(p % 4), 4)}, {vROT[p // 4]} offset:{(p % 4)*1024}"
    def mm(m, p, t, first):
        acc = vr((AQ, AK, AV)[m] + 4*t, 4)
        A, Bo = (Wr(m, p, t), fr(p)) if m < 2 else (fr(p), Wr(m, p, t))
        a(f"v_mfma_f32_16x16x32_bf16 {acc}, {A}, {Bo}, {'0' if first else acc}")
    KMR = KXR + 4
    kvl = [f"buffer_load_dwordx4 {vL16}, {WS}, {dKX} offen sc1 lds", f"buffer_load_dwordx4 {vL16}, {WS}, {dKX} offen offset:1024 sc1 lds",
           f"buffer_store_dwordx4 {vr(SM, 4)}, {vVMP}, {WS}, {qKVM} offen offset:2048 sc1",
           f"buffer_store_dwordx4 {vr(KMR, 4)}, {vKMP}, {WS}, {qKVM} offen sc1"]
    kvl += [f"buffer_load_dwordx4 {vr(VXR + 4*k, 4)}, {vL16}, {WS}, {dVX} offen offset:{k*1024} sc1" for k in range(2)]
    kvl += [ldF, f"buffer_store_dword v{KXR+2}, {vX1P}, {WS}, {rX1R} offen sc1", f"buffer_store_dword v{KXR+2}, {vX1P}, {WS}, {rX1L} offen"]
    stF = f"buffer_store_dword v{KXR}, v{KXR+1}, {WS}, {qFLG} offen sc1"
    kxr = [f"ds_read_b128 {vr(KXR + 4*k, 4)}, {vROT[k // 2]} offset:{6144 + (k % 2)*1024}" for k in range(8)]
    a(f"ds_read_b128 {vr(KMR, 4)}, {vROT[0]} offset:4096")
    mm(0, 0, 0, True); mm(0, 0, 1, True); mm(1, 0, 0, True); mm(1, 0, 1, True)
    a("s_waitcnt lgkmcnt(0)\ns_barrier")
    stamp(4)
    trace(a, diag, n, 0, (KXR + 8, KXR + 9))
    def mt(m, p, t, first=False):
        acc = vr((AQ, AK, AV)[m] + 4*t, 4)
        A, Bo = (Wr(m, p, t), fr(p)) if m < 2 else (fr(p), Wr(m, p, t))
        return f"v_mfma_f32_16x16x32_bf16 {acc}, {A}, {Bo}, {'0' if first else acc}"
    E = frozenset()
    st = Stream(a)
    M = []
    for p in range(1, 14):
        for k, (m, t) in enumerate(((0, 0), (0, 1), (1, 0), (1, 1))):
            M.append((mt(m, p, t), [rd(4 + k)] if p == 1 else ([rd(p + 4)] if (k == 3 and 4 <= p < 12) else []), E))
    M += [(mt(m, p, t), [], E) for m in range(2) for p in (14, 15) for t in range(2)]
    kpos = opt.get('kpos', 'b2'); kst = opt.get('kst', 4)
    q = [f"v_mov_b32 v{KXR+2}, -1"]
    for k, x in enumerate(kvl): q += [('at', 5 + k * kst), x]
    bar = ["s_waitcnt vmcnt(7)\ns_barrier"]
    if kpos == 12: q += [('at', 44)] + bar + kxr
    qs = [Q(q)]; weave(st, M, qs); flush(st, qs)
    mm(2, 12, 0, True)
    for k in range(4): a(cvt(TMP, AQ, k))
    a(f"buffer_store_dwordx4 {vr(TMP, 4)}, {vQS}, {WS}, {dX2s} offen")
    mm(2, 12, 1, True)
    for k in range(4): a(cvt(TMP + 4, AK, k))
    a(f"buffer_store_dwordx4 {vr(TMP + 4, 4)}, {vKS}, {WS}, {dX2s} offen")
    stamp(5)
    fill = [f"v_mov_b32_dpp v{AQ + k}, v{AQ + k} row_ror:8 row_mask:0xf bank_mask:0xf" for k in range(8)]
    fill += [f"v_cndmask_b32 v{AK + k}, v{AQ + k}, v{AK + k}, {mOWN16}" for k in range(8)]
    fill += [f"v_cndmask_b32 v{SM + k}, {vNINF}, 0, {mOWN32}" for k in range(4)]
    RQ = AQ
    ldQ = f"buffer_load_dwordx4 {vr(RQ, 4)}, {vL16}, {WS}, {dX2r} offen sc1"
    st.ds = []
    st.emit(rd(4))
    M = []
    for p in [13, 14, 15, 0, 1, 2, 3, 4, 5, 6, 7, 8, 9, 10, 11]:
        M += [(mt(2, p, 0), [], E), (mt(2, p, 1), [rd(p - 8)] if p >= 13 else ([rd(p + 4)] if 4 <= p < 8 else []), E)]
    qs = [Q(fill[:16] + [('at', opt.get('qpos', 16)), ldQ] + fill[16:])]
    weave(st, M, qs); flush(st, qs)
    stamp(6)
    a("s_waitcnt vmcnt(0)")
    if kpos == 'b2': a(kxr[0]); a(kxr[1])
    a.label("L_R_x2")
    chk(rng(RQ, 4), True)
    a(CMP)
    FT = RING
    for k in range(4):
        a(f"v_dot2_f32_bf16 v{FT + 2*k}, v{RQ + k}, {sLO}, v{AK + 2*k}\nv_dot2_f32_bf16 v{FT + 2*k + 1}, v{RQ + k}, {sHI}, v{AK + 2*k + 1}")
    br(ldQ, "L_R_x2", 5, 2)
    for k in range(4): a(cvt(OWN, FT, k))
    a(f"ds_write_b128 {vROT[0]}, {vr(OWN, 4)} offset:4096")
    SX = [TMP, TMP + 4]
    def smm(p, fl=()):
        F = vr(OWN + 4*p, 4); fl = list(fl)
        for tt in range(3):
            if tt < 2: a(f"v_mfma_f32_16x16x32_bf16 {vr(SX[tt], 4)}, {vr(KXR + 8*p + 4*tt, 4)}, {F}, {'0' if p == 0 else vr(SX[tt], 4)}")
            else: a(f"v_mfma_f32_16x16x32_bf16 {vr(SM, 4)}, {F}, {F}, {vr(SM, 4)}")
            for _ in range(2):
                if fl: a(fl.pop(0))
        for x in fl: a(x)
    VS = RING + 8
    for k in range(4): a(cvt(VS, AV, k))
    a(f"buffer_store_dwordx4 {vr(VS, 4)}, {vVS}, {WS}, {dX2sv} offen")
    a("s_waitcnt lgkmcnt(0)\ns_barrier")
    stamp(7)
    rdF = lambda p: f"ds_read_b128 {vr(OWN + 4*p, 4)}, {vROT[p]} offset:4096"
    ONES, PX, PM, OO, LL, MX = KEEP, KEEP + 4, KEEP + 12, KEEP + 16, KEEP + 24, KEEP + 28
    VA = KXR
    zz = [f"v_cndmask_b32 v{AV + k}, 0, v{AV + k}, {mOWN32}" for k in range(8)] + [f"v_mov_b32 v{ONES + k}, 0x3f803f80" for k in range(4)]
    zz += [f"v_cvt_pk_bf16_f32 v{VA + 4*(k // 2) + k % 2}, v{AV + 2*k}, v{AV + 2*k + 1}" for k in range(4)]
    ldV = f"buffer_load_dwordx2 {vr(VA + 2, 2)}, {vVMP}, {WS}, {dX2rv} offen sc1\nbuffer_load_dwordx2 {vr(VA + 6, 2)}, {vVMP}, {WS}, {dX2rv} offen offset:8 sc1"
    st = Stream(a)
    rs = []
    for p in range(1, 4): rs += [rdF(p)] + ([kxr[2*p], kxr[2*p + 1]] if kpos == 'b2' else [])
    for x in rs[:opt.get('pre', 4)]: st.emit(x)
    rs = rs[opt.get('pre', 4):]
    M = []
    for p in range(4):
        F = vr(OWN + 4*p, 4)
        ms = [f"v_mfma_f32_16x16x32_bf16 {vr(SM, 4)}, {F}, {F}, {vr(SM, 4)}"]
        ms += [f"v_mfma_f32_16x16x32_bf16 {vr(SX[tt], 4)}, {vr(KXR + 8*p + 4*tt, 4)}, {F}, {'0' if p == 0 else vr(SX[tt], 4)}" for tt in range(2)]
        M += [(x, [rs.pop(0)] if rs else [], E) for x in ms]
    qs = [Q(zz[:12] + [('at', 4)] + zz[12:])]; weave(st, M, qs); flush(st, qs)
    a(ldV)
    sG = [dX3c, t0, t1, t2]
    a(f"s_add_u32 {t0}, {dX3c}, 4096\ns_add_u32 {t1}, {dX3c}, 8192\ns_add_u32 {t2}, {dX3c}, 12288")
    s = rng(SX[0], 8) + rng(SM, 4)
    a(f"v_max3_f32 v{MX}, v{s[0]}, v{s[1]}, v{s[2]}\nv_max3_f32 v{MX+1}, v{s[3]}, v{s[4]}, v{s[5]}\nv_max3_f32 v{MX}, v{MX}, v{s[6]}, v{s[7]}")
    a(f"v_max3_f32 v{MX+1}, v{MX+1}, v{s[8]}, v{s[9]}\nv_max3_f32 v{MX+2}, v{MX}, v{s[10]}, v{s[11]}\nv_max_f32 v{MX}, v{MX+2}, v{MX+1}\nv_max_f32 v{MX+1}, v{MX+2}, v{MX+1}")
    a(f"v_permlane16_swap_b32 v{MX}, v{MX+1}\nv_max_f32 v{MX+2}, v{MX}, v{MX+1}\nv_max_f32 v{MX+3}, v{MX}, v{MX+1}")
    a(f"v_permlane32_swap_b32 v{MX+2}, v{MX+3}\nv_max_f32 v{MX}, v{MX+2}, v{MX+3}\nv_mul_f32 v{MX}, {sNC}, v{MX}")
    for k in range(6): a(f"v_pk_fma_f32 {vr(s[2*k], 2)}, {vr(s[2*k], 2)}, {sCC}, {vr(MX, 2)} op_sel_hi:[1,1,0]")
    for r in s[:8]: a(f"v_exp_f32 v{r}, v{r}")
    for k in range(4): a(f"v_cvt_pk_bf16_f32 v{PX + k}, v{s[2*k]}, v{s[2*k+1]}")
    for r in s[8:10]: a(f"v_exp_f32 v{r}, v{r}")
    a(f"v_mfma_f32_16x16x32_bf16 {vr(LL, 4)}, {vr(ONES, 4)}, {vr(PX, 4)}, 0")
    a(f"v_exp_f32 v{s[10]}, v{s[10]}")
    a(f"v_mfma_f32_16x16x32_bf16 {vr(OO, 4)}, {vr(VXR, 4)}, {vr(PX, 4)}, 0")
    a(f"v_exp_f32 v{s[11]}, v{s[11]}")
    a(f"v_mfma_f32_16x16x32_bf16 {vr(OO + 4, 4)}, {vr(VXR + 4, 4)}, {vr(PX, 4)}, 0")
    stamp(8)
    a("s_waitcnt vmcnt(0)")
    a.label("L_R_x2v")
    chk([VA + 2, VA + 3, VA + 6, VA + 7], True)
    a(CMP)
    for k in range(4): a(f"v_cvt_pk_bf16_f32 v{PM + k}, v{s[8 + 2*(k % 2)]}, v{s[9 + 2*(k % 2)]}")
    br(ldV, "L_R_x2v", 6, 2)
    a(f"v_mfma_f32_16x16x16_bf16 {vr(LL, 4)}, {vr(ONES, 2)}, {vr(PM, 2)}, {vr(LL, 4)}")
    for t in range(2): a(f"v_mfma_f32_16x16x32_bf16 {vr(OO + 4*t, 4)}, {vr(VA + 4*t, 4)}, {vr(PM, 4)}, {vr(OO + 4*t, 4)}")
    for k in range(4): a(f"v_mov_b32 v{TMP + k}, -1")
    a(f"v_rcp_f32 v{MX}, v{LL}")
    for k in range(4): a(f"v_pk_mul_f32 {vr(OO + 2*k, 2)}, {vr(OO + 2*k, 2)}, {vr(MX, 2)} op_sel_hi:[1,0]")
    for k in range(4): a(cvt(PX, OO, k))
    a(f"buffer_store_dwordx4 {vr(PX, 4)}, {vOP}, {WS}, {dX3p} offen")
    stamp(9)
    a(f"buffer_store_dwordx4 {vr(TMP, 4)}, {vL16}, {WS}, {rX2s} offen\nbuffer_store_dwordx4 {vr(TMP, 4)}, {vVS}, {WS}, {rX2sv} offen\nbuffer_store_dwordx4 {vr(TMP, 4)}, {vOP}, {WS}, {rX3p} offen")
    for k in range(4):
        r = VA + 4*(k // 2) + 2 + k % 2
        a(f"v_dot2c_f32_bf16 v{AV + 2*k}, {sLO}, v{r}\nv_dot2c_f32_bf16 v{AV + 2*k + 1}, {sHI}, v{r}")
    for k in range(4): a(cvt(SM, AV, k))
    a(f"s_barrier\ns_cmp_eq_u32 {n}, {63 + D}\ns_cbranch_scc1 L_R_done")
    WR = [OWN, OWN + 4, OWN + 8, OWN + 12, VXR, VXR + 4, AV, AV + 4]
    wrd = lambda f: f"ds_read_b128 {vr(WR[f % 8], 4)}, {vWO} offset:{f*1024}"
    OF = lambda k: (KXR + 4*(k % 12)) if k % 12 < 8 else (RING + 4*(k % 12 - 8))
    for f in range(8): a(wrd(f))
    ld1 = lambda k: f"buffer_load_dwordx4 {vr(OF(k), 4)}, {vX3C}, {WS}, {sG[k // 4]} offen offset:{(k % 4)*1024} sc1"
    a(f"s_waitcnt vmcnt({opt.get('w3', 3)})")
    for _ in range(opt.get('d3', 0)): a("s_nop 15")
    stamp(10)
    AHEAD = opt.get('ahead', 6)
    issued = AHEAD
    for k in range(AHEAD): a(ld1(k))
    AC = [AQ, AK]
    def m3(k, t):
        G = k // 4; f = 2*k + t
        D_ = vr(AC[G % 2] + 4*t, 4)
        C_ = '0' if k == 0 else (vr(AC[(G - 1) % 2] + 4*t, 4) if k % 4 == 0 else D_)
        return f"v_mfma_f32_16x16x32_bf16 {D_}, {vr(WR[f % 8], 4)}, {vr(OF(k), 4)}, {C_}"
    slow = []
    for k in range(16):
        G = k // 4
        a(f"s_waitcnt vmcnt({issued - k - 1}) lgkmcnt({min(6, 30 - 2*k)})")
        c = chkl(rng(OF(k), 4), k % 4 == 0)
        if k % 4 == 3: a(c[0]); a(c[1]); a(CMP); c = ["", ""]
        for t in range(2):
            a(m3(k, t))
            if c[t]: a(c[t])
            if 2*k + t + 8 < 32: a(wrd(2*k + t + 8))
        if issued < 16: a(ld1(issued)); issued += 1
        if k % 4 == 3:
            a(f"s_cbranch_vccnz L_R_x3s{G}"); a.label(f"L_R_x3b{G}")
            slow.append((G, issued))
            if G == 0: stamp(11)
    stamp(12)
    FA = AC[1]
    a(f"s_add_u32 {n}, {n}, 1\ns_mov_b32 {qKVM}, {dKVM}")
    a(f"ds_write_b128 {vROT[0]}, {vr(FA, 4)} offset:6144\nds_write_b128 {vROT[0]}, {vr(FA + 4, 4)} offset:7168")
    a(f"s_waitcnt lgkmcnt(0)\ns_barrier")
    stamp(13)
    for q in range(4): a(f"ds_read_b64 {vr(AQ + 2*q, 2)}, {vRED} offset:{q*8192 + 6144}")
    a(f"s_waitcnt lgkmcnt(2)\nv_pk_add_f32 {vr(AQ, 2)}, {vr(AQ, 2)}, {vr(AQ + 2, 2)}")
    a(f"s_waitcnt lgkmcnt(0)\nv_pk_add_f32 {vr(AQ + 4, 2)}, {vr(AQ + 4, 2)}, {vr(AQ + 6, 2)}")
    a(f"v_pk_add_f32 {vr(AQ, 2)}, {vr(AQ, 2)}, {vr(AQ + 4, 2)}\nv_cvt_pk_bf16_f32 v{AQ}, v{AQ}, v{AQ+1}")
    a(f"v_cndmask_b32 v{AQ}, v{AQ}, {vM0}, {mINJ}")
    a(f"buffer_store_dword v{AQ}, {vX1P}, {WS}, {dX1Lp} offen\nbuffer_store_dword v{AQ}, {vX1P}, {WS}, {dX1Rp} offen sc1")
    stamp(14)
    a("s_branch L_R_step")
    for G, iss in slow:
        a.label(f"L_R_x3s{G}")
        a("s_nop 7")
        for f in range(8*G, 8*G + 8): a(wrd(f))
        a.label(f"L_R_x3r{G}")
        if diag == 1: a(cnt(3).strip())
        for k in range(4*G, iss): a(ld1(k))
        a(f"s_add_u32 s3, s3, 1\ns_cmp_lt_u32 s3, {SPIN}\ns_cbranch_scc0 L_R_x3abort\ns_waitcnt vmcnt({iss - 4*G - 4})")
        chk([OF(k) + e for k in range(4*G, 4*G + 4) for e in range(4)], True)
        a(f"{CMP}\ns_cbranch_vccnz L_R_x3r{G}\ns_waitcnt lgkmcnt(0)")
        for k in range(4*G, 4*G + 4):
            for t in range(2):
                a(m3(k, t))
                if 2*k + t + 8 < 32: a(wrd(2*k + t + 8))
        a(f"s_branch L_R_x3b{G}")
    a.label("L_R_x3abort")
    a("s_mov_b32 s3, 7\ns_branch L_abort")
    for l, loads, back, code in retries:
        a.label(l)
        a(loads); a("s_waitcnt vmcnt(0)")
        spin_tail(a, back, code)
    a.label("L_R_done")
    a(f"buffer_store_dwordx4 {vr(OWN, 4)}, {vKMP}, {WS}, {dKVM} offen sc1\nbuffer_store_dwordx4 {vr(SM, 4)}, {vVMP}, {WS}, {dKVM} offen offset:2048 sc1")
    a(f"v_mov_b32 v{TMP+1}, 0")
    if diag:
        a(f"s_memrealtime s[92:93]\ns_waitcnt lgkmcnt(0)\ns_sub_u32 s92, s92, s98\ns_sub_u32 s93, s98, s90")
        a(f"s_lshl_b32 s94, {gx}, 5\ns_add_u32 s94, s94, {i}\ns_lshl_b32 s94, s94, 2\ns_add_u32 s94, s94, {w}\ns_lshl_b32 s94, s94, 4\ns_add_u32 s94, s94, {DIAG}")
        a(f"v_mov_b32 v20, s92\nv_mov_b32 v21, s93\nv_mov_b32 v22, s100\nv_mov_b32 v23, s101\nbuffer_store_dwordx4 v[20:23], v{TMP+1}, {WS}, s94 offen")
        if stamps:
            a(f"s_sub_u32 s94, s94, {DIAG}\ns_lshl_b32 s94, s94, 2\ns_add_u32 s94, s94, {DIAG + 0x4000}")
            for k in range(16): a(f"v_mov_b32 v{24+k}, s{64+k}")
            for k in range(4): a(f"buffer_store_dwordx4 {vr(24+4*k,4)}, v{TMP+1}, {WS}, s94 offen offset:{16*k}")
    a("s_endpgm")

import struct
def f2u(x): return struct.unpack("<I", struct.pack("<f", x))[0]
```

```python
from asmgen import *

def vcost(ins):
    if ins.kind != "valu": return 0
    if ins.mn.startswith(TRANS) or ins.mn.startswith("v_permlane"): return 8
    return 4

class Stream:
    def __init__(self, a, ds=None):
        self.a = a; self.ds = list(ds or []); self.nv = 0; self.lastld = 0; self.cyc = 0
    def emit(self, text, also=frozenset()):
        n = 0
        for line in text.split("\n"):
            ins = I(line)
            if ins.kind in ("valu", "mfma", "ds", "vmem"):
                hit = -1
                for k, regs in enumerate(self.ds):
                    if regs & (ins.r | also | (ins.w if ins.kind != "ds" else set())): hit = k
                if hit >= 0:
                    left = len(self.ds) - 1 - hit
                    self.a(f"s_waitcnt lgkmcnt({min(left, 15)})"); n += 1
                    self.ds = self.ds[len(self.ds) - min(left, 15):] if left else []
            if ins.mn == "s_waitcnt" and "lgkmcnt(0)" in line: self.ds = []
            self.a(line)
            if ins.kind == "ds": self.ds.append(set(ins.w))
            if ins.kind == "vmem":
                self.nv += 1
                if "_load" in ins.mn: self.lastld = self.nv
            if ins.kind not in ("none", "label"): n += 1
        return n

    def prewait(self, regs):
        hit = max([k for k, r in enumerate(self.ds) if r & regs], default=-1)
        if hit < 0: return False
        left = min(len(self.ds) - 1 - hit, 15)
        self.a(f"s_waitcnt lgkmcnt({left})")
        self.ds = self.ds[len(self.ds) - left:] if left else []
        return True

class Q:
    def __init__(self, items=()): self.it = list(items); self.hold = 0
    def ready(self, slot):
        while self.it and isinstance(self.it[0], tuple):
            if self.it[0][0] == "until":
                if not self.it[0][1](): return False
                self.it.pop(0); continue
            k, v = self.it.pop(0)
            self.hold = max(self.hold, slot + v if k == "gap" else v)
        return bool(self.it) and slot >= self.hold
    def peek(self):
        x = self.it[0]
        return x
def adv(t, ins):
    if ins.kind in ("none", "label"): return t
    if ins.kind == "valu": return max(t, 2) + vcost(ins) // 4
    if ins.kind in ("ds", "vmem"): return t + (2 if t == 1 else 3)
    return t + 1
def weave(st, mfmas, queues, slot0=0, over=None):
    slot = slot0
    for k, (m, foll, also) in enumerate(mfmas):
        st.emit(m, also); t = 1
        slot += 1
        for f in foll: st.emit(f); t = adv(t, I(f))
        lim = 4 + (over(slot) if over else 0)
        if k + 1 < len(mfmas):
            nx = I(mfmas[k + 1][0])
            if st.prewait(nx.r | mfmas[k + 1][2]): t += 1
        while True:
            cand = []
            for q in queues:
                if not q.ready(slot): continue
                x = q.peek()
                txt = x() if callable(x) else x
                L = [I(l) for l in txt.split("\n")]
                cand.append((q, txt, L))
            if t == 1: cand.sort(key=lambda c: c[2][0].kind in ("valu", "mfma"))
            for q, txt, L in cand:
                if L[0].kind == "mfma":
                    q.it.pop(0); st.cyc += 4 * max(t, 4); st.emit(txt); t = 1; break
                tt = t
                for i in L: tt = adv(tt, i)
                if tt <= lim or t == 1 or 's_memtime' in txt:
                    q.it.pop(0); st.emit(txt); t = tt; break
            else: break
        st.cyc += 4 * max(t, 4)
    return slot
def flush(st, queues):
    for q in queues:
        for x in q.it:
            if not isinstance(x, tuple): st.emit(x() if callable(x) else x)
        q.it = []

def split_dma(x):
    if "s_cbranch" in x: return [x]
    L = x.split("\n")
    return L[:-1] + [('gap', 1), L[-1]] if len(L) > 1 else L
```

```python
import sys
from asmgen import *
from layout import *
from role_r import *
from role_g import *
from role_qa import *
KN = "interleave_layers__memory_aug_recurrent_mem_tr__glu_gated_geglu__prompt_kernel"

def prologue(a, diag):
    a("s_cmp_ge_u32 s2, 256\ns_cbranch_scc1 L_exit")
    a("s_load_dwordx16 s[64:79], s[0:1], 0\ns_load_dwordx8 s[80:87], s[0:1], 64\ns_load_dwordx4 s[88:91], s[0:1], 96")
    a(f"s_getreg_b32 {sXC}, hwreg(HW_REG_XCC_ID)\ns_and_b32 {sXC}, {sXC}, 15")
    a(f"v_readfirstlane_b32 {sW}, v0\ns_lshr_b32 {sW}, {sW}, 6\nv_and_b32 v0, 63, v0\ns_waitcnt lgkmcnt(0)")
    srd(a, 4, 90, WS_BYTES); srd(a, 12, 88, 256)
    if diag: a("s_memrealtime s[90:91]\ns_waitcnt lgkmcnt(0)")
    a(f"v_mov_b32 v2, 0\ns_cmp_lg_u32 {sW}, 0\ns_cbranch_scc1 L_tk")
    a(f"s_mov_b64 exec, 1\nv_mov_b32 v1, 1\ns_lshl_b32 s3, {sXC}, 5\nbuffer_atomic_add v1, v2, {DBG}, s3 offen sc0\ns_waitcnt vmcnt(0)\nds_write_b32 v2, v1\ns_waitcnt lgkmcnt(0)\ns_mov_b64 exec, -1")
    a.label("L_tk")
    a(f"s_barrier\nds_read_b32 v1, v2\ns_waitcnt lgkmcnt(0)\nv_readfirstlane_b32 {sSLOT}, v1\ns_barrier")
    a(f"s_cmp_ge_u32 {sSLOT}, 32\ns_cbranch_scc1 L_exit\ns_cmp_ge_u32 {sXC}, 8\ns_cbranch_scc1 L_exit")
    if diag == 2:
        a(f"s_lshl_b32 s91, {sXC}, 5\ns_add_u32 s91, s91, {sSLOT}\ns_lshl_b32 s91, s91, 2\ns_add_u32 s91, s91, {sW}\ns_lshl_b32 s91, s91, 12\ns_add_u32 s91, s91, {WS_END}\ns_mov_b32 s90, 0")
        trace(a, diag, 255, 0)

def finish(a):
    a.label("L_abort")
    a(f"v_mov_b32 v1, s3\nv_mov_b32 v2, 8\nbuffer_store_dword v1, v2, {DBG}, 0 offen sc1")
    a.label("L_exit")
    a("s_endpgm")

def gen_r_only(D=9, diag=True, sel=0, **kw):
    a = Asm()
    a("; @launch grid=(256,1,1) block=(256,1,1) lds=163840")
    a('.amdgcn_target "amdgcn-amd-amdhsa--gfx950"\n.text')
    a(kernel_header(KN))
    prologue(a, diag)
    a(f"s_cmp_lt_u32 {sXC}, 2\ns_cbranch_scc1 L_role_R")
    arrive(a); a("s_endpgm")
    role_R(a, D, diag, sel, **kw)
    finish(a)
    a.fix_fast()
    a('.section .rodata,"a"\n.p2align 6')
    a(kernel_desc(KN))
    return a.text()
HEADER = open("interleave_layers__memory_aug_recurrent_mem_tr__glu_gated_geglu__prompt.s.ref").read().split("; Override")[0] if __import__("os").path.exists("interleave_layers__memory_aug_recurrent_mem_tr__glu_gated_geglu__prompt.s.ref") else ""
DEFAULTS = dict(pol_DN=' nt', d3=3)
def far(a, cond, label):
    a(f"s_cbranch_{cond} {label}")
def gen(D=11, diag=False, sel=None, opt=None, stamps=False):
    opt = dict(DEFAULTS, **(opt or {}))
    a = Asm()
    a(HEADER.rstrip())
    a("; @launch grid=(256,1,1) block=(256,1,1) lds=163840")
    a('.amdgcn_target "amdgcn-amd-amdhsa--gfx950"\n.text')
    a(kernel_header(KN))
    prologue(a, diag)
    a(f"s_cmp_lt_u32 {sXC}, 2\ns_cbranch_scc1 L_role_R")
    a(f"s_sub_u32 s20, {sXC}, 2\ns_lshl_b32 s21, s20, 3\ns_add_u32 s21, s21, {sSLOT}        ; x*8+slot")
    a(f"s_sub_u32 s22, {sSLOT}, 8\ns_mul_i32 s22, s22, 6\ns_add_u32 s22, s22, s20\ns_add_u32 s22, s22, 48")
    a(f"s_cmp_lt_u32 {sSLOT}, 8\ns_cselect_b32 s23, s21, s22")
    a(f"s_sub_u32 s21, s23, 64\ns_cmp_lt_u32 s23, 48\ns_cselect_b32 s21, s23, s21\ns_cbranch_scc1 L_ln0\ns_cmp_lt_u32 s23, 112\ns_cbranch_scc1 L_disp")
    a.label("L_ln0")
    a(f"s_lshl_b32 s21, s21, 2\ns_add_u32 s21, s21, {sW}")
    ln0(a, "s21", opt.get("pf", 0))
    a.label("L_disp")
    lo = 0
    for nm, n in (("WO", 24), ("DN", 24), ("PJ", 64), ("AT", 16), ("GU", 56)):
        a(f"s_sub_u32 {sU}, s23, {lo}\ns_cmp_lt_u32 {sU}, {n}\ns_cbranch_scc1 L_role_{nm}"); lo += n
    a(f"s_sub_u32 {sU}, s23, {lo}\ns_branch L_role_LN")
    post = order_mask(D + 1)
    kv = order_mask(opt.get('kv0', 16), opt.get('kvp'))
    role_LN(a, diag, opt)
    role_PJ(a, kv, diag, opt)
    role_AT(a, diag, opt)
    finish(a)
    sk = opt.get("skew", (0, 1, 2))
    role_P(a, "WO", order_mask(D + 1 + sk[0]), diag, opt); role_P(a, "DN", order_mask(D + 1 + sk[2]), diag, opt)
    role_GU(a, order_mask(D + 1 + sk[1]), diag, opt)
    ro = dict(d3=4); ro.update(opt)
    role_R(a, D, diag, sel, stamps=stamps, opt=ro)
    a.fix_fast()
    a('.section .rodata,"a"\n.p2align 6')
    a(kernel_desc(KN))
    return a.text()
if __name__ == "__main__":
    open(sys.argv[1], "w").write(gen(diag=len(sys.argv) > 2))
```

```python
K = 1024
MB = 1 << 20
FS = 640
FB = 0x180000
F_KV = FB
F_R  = FB + 64 * FS
CB = FB + 128 * FS
G_WO, G_DN, G_PJ, G_LA, G_LB, G_GU, NG = 0, 24, 48, 112, 120, 128, 184
PROBE = 0x20000
DIAG = 0x10000
X1L = 0x40000
X1R = 0x80000
X3  = 0x100000
X2  = 0x200000
KX  = 4 * MB
VX  = 36 * MB
KVM = 68 * MB
XN  = 84 * MB
XR  = 100 * MB
OB  = 112 * MB
HB  = 144 * MB
HS = 224 * 1024
PW  = 176 * MB
PD  = 200 * MB
QX  = 224 * MB
WS_END = 172 * MB
WS_BYTES = 256 * MB
OOB = 0x10000000
```

```python
from asmgen import *
from layout import *
from role_r import *
from weave import *

sU = "s19"
sI = "s20"; sC0, sC1 = "s21", "s22"
sMK = ["s[24:25]", "s[26:27]"]
nL, nB, nJ, nSRC, nTHR, nFB = "s28", "s29", "s30", "s31", "s32", "s33"
cL, cB, cJ = "s34", "s35", "s36"
pOFF, pVAL = "s37", "s38"
sRDY, sDMA, sLIVE = "s39", "s40", "s41"
mL, mB, mJ, mSRC, mTHR, mFB = "s80", "s81", "s82", "s83", "s84", "s85"
eO0, eO1 = "s86", "s87"
bSRC, bPUB, bO0, bO1 = "s42", "s43", "s44", "s45"
T0, T1, T2, T3 = "s92", "s93", "s94", "s95"
vL16, vDMA, vSIG, vZ, vOUT, vPV = "v0", "v1", "v2", "v3", "v4", "v5"
vRD = ["v6", "v7", "v8"]
PR = 12
ACCS = [16, 40]
XF = 64
TM = 96
RINGN = 4

def Wn(r): return ("a", r) if r < 256 else ("v", r - 128)
def Wr(r, n=4): return vr(Wn(r)[1], n, Wn(r)[0])

def order_mask(s0, pattern=None):
    seq = [0] * s0; c0 = s0; c1 = 0; k = 0
    while c1 < 64:
        seq.append(1); c1 += 1
        n0 = 1 if pattern is None else pattern[k % len(pattern)]
        k += 1
        for _ in range(n0):
            if c0 < 64: seq.append(0); c0 += 1
    assert len(seq) == 128 and c0 == 64
    return sum(b << i for i, b in enumerate(seq))

def lane_consts(a, layout):
    a("v_mov_b32 v20, v0\nv_lshlrev_b32 v0, 4, v20\nv_mov_b32 v3, 0")
    a(f"v_and_b32 v21, 15, v20\nv_lshlrev_b32 v21, 4, v21\nv_lshrrev_b32 v22, 4, v20\nv_lshl_add_u32 v19, v22, 9, v21      ; g*512+m*16")
    if layout == "AL": a(f"v_mov_b32 {vDMA}, {vL16}\nv_mov_b32 {vRD[0]}, v19")
    else:
        a(f"s_and_b32 {T0}, {sW}, 1\ns_lshl_b32 {T0}, {T0}, 7\nv_xor_b32 {vDMA}, {T0}, {vL16}")
        a(f"v_bfe_u32 v21, v20, 2, 2\nv_lshlrev_b32 v23, 13, v21\nv_and_b32 v21, 1, v21\nv_lshlrev_b32 v21, 1, v21\nv_xor_b32 v22, v22, v21\nv_lshl_add_u32 v23, v22, 6, v23")
        a(f"v_and_b32 v22, 3, v20\nv_lshl_add_u32 {vRD[0]}, v22, 4, v23")
    a(f"v_add_u32 {vRD[1]}, 0x10000, {vRD[0]}\nv_add_u32 {vRD[2]}, 0x20000, {vRD[0]}")

def sig_lanes(a, g0, n):
    a(f"v_add_u32 v21, {g0}, v20\nv_mul_u32_u24 v21, {FS}, v21\nv_mov_b32 v22, 0x40000000\nv_cmp_gt_u32 vcc, {n}, v20\nv_cndmask_b32 {vSIG}, v22, v21, vcc\nv_mov_b32 {vPV}, 1")

def own_counters(a, g0, idx):
    a(f"s_mul_i32 {bCNT}, {idx}, {FS}\ns_add_u32 {bCNT}, {bCNT}, {CB + g0 * FS}\nv_lshrrev_b32 v21, 1, {vL16}\nv_mov_b32 v22, 0\nv_mov_b32 v23, 0")
    a(f"buffer_store_dwordx2 v[22:23], v21, {WS}, {bCNT} offen sc1")

def load_weights(a, units, pol=''):
    a(f"s_lshl_b32 s46, {sW}, 15")
    def dma(B):
        for k, (S, v, sb, c) in enumerate(units[B][0]):
            a(f"s_add_u32 {T0}, {sb}, {c}\ns_add_u32 m0, s46, {(B % 16) * 2048 + k * 1024}\nbuffer_load_dwordx4 {v}, {S}, {T0} offen{pol} lds")
    n = len(units)
    for B in range(min(16, n)): dma(B)
    for B in range(n):
        a(f"s_waitcnt vmcnt({min(30, 2 * (n - 1 - B))})")
        for (r, v, off) in units[B][1]:
            a(f"ds_read_b64_tr_b16 {Wr(r, 2)}, {v} offset:{(B % 16) * 2048 + off}")
        if B + 16 < n: a("s_waitcnt lgkmcnt(0)"); dma(B + 16)
    a("s_waitcnt lgkmcnt(0)")

def stage_addrs(a, rs):
    a(f"s_mov_b32 {T1}, {rs}\ns_lshl_b32 {T2}, {sW}, 15")
    a(f"v_lshrrev_b32 v21, 2, v20\nv_mul_lo_u32 v21, v21, {T1}\nv_and_b32 v22, 3, v20\nv_lshlrev_b32 v23, 4, v22\nv_add_u32 v31, v21, v23")
    a(f"v_lshrrev_b32 v21, 1, v20\nv_mul_lo_u32 v21, v21, {T1}\nv_and_b32 v24, 1, v20\nv_lshl_add_u32 v32, v24, 4, v21")
    a(f"v_lshrrev_b32 v24, 4, v20\nv_bfe_u32 v25, v20, 2, 2\nv_lshl_add_u32 v26, v25, 6, {T2}")
    a(f"v_lshl_add_u32 v27, v24, 9, v26\nv_add_u32 v33, v27, v23\nv_lshl_add_u32 v34, v22, 3, v27")
    a(f"v_lshl_add_u32 v27, v24, 8, v26\nv_add_u32 v35, v27, v23")
    a(f"v_lshl_add_u32 v26, v25, 5, {T2}\nv_lshl_add_u32 v27, v24, 8, v26\nv_lshl_add_u32 v36, v22, 3, v27")

def pair_units(S, sb, rs, nks, nt, t0, mode):
    U = []
    for s in range(nks):
        d = [(S, "v31", sb, (32 * s + 16 * k) * rs) for k in range(2)]
        rd = []
        for t in range(2):
            for u in range(2):
                r = (s * nt + t0 + t) * 4 + 2 * u
                rd.append({"A": (r, "v33", u * 256 + t * 8), "V": (r, "v34", u * 256 + t * 32), "O": (r, "v35", u * 1024 + t * 8)}[mode])
        U.append((d, rd))
    return U

bCNT, sNP, sPOL = "s60", "s61", "s62"
def next_job(src_l, src_b, l0_ready):
    t = f"s_cmp_lt_u32 {sI}, 64\ns_cselect_b64 s[88:89], {sMK[0]}, {sMK[1]}|s_bitcmp1_b64 s[88:89], {sI}\ns_cselect_b32 {mL}, 1, 0\ns_cselect_b32 {mB}, {sC1}, {sC0}"
    t += f"|s_add_u32 {sC1}, {sC1}, {mL}|s_xor_b32 s88, {mL}, 1|s_add_u32 {sC0}, {sC0}, s88|s_lshl_b32 {mJ}, {mL}, 6|s_add_u32 {mJ}, {mJ}, {mB}"
    if src_l == 64 * src_b: t += f"|s_mul_i32 {mSRC}, {mJ}, {src_b}"
    else: t += f"|s_mul_i32 s88, {mL}, {src_l}|s_mul_i32 s89, {mB}, {src_b}|s_add_u32 {mSRC}, s88, s89"
    t += f"|s_add_u32 {mSRC}, {mSRC}, {bSRC}|s_lshl2_add_u32 {mFB}, {mJ}, {bCNT}"
    t += f"|s_cmp_lt_u32 {sI}, 128\ns_cselect_b32 {mSRC}, {mSRC}, {OOB}\ns_cselect_b32 {mTHR}, {sNP}, 0|s_add_u32 {sI}, {sI}, 1"
    if l0_ready: t += f"|s_mul_i32 {mTHR}, {mTHR}, {mL}"
    return t.split("|")

def poll(fb): return f"s_buffer_load_dword {sPOL}, {WS}, {fb} glc"
def pchk(thr): return f"s_cmp_ge_u32 {sPOL}, {thr}"
vCNT, vOWN, sPEND, sJN, sW0 = "v9", "v11", "s58", "s59", "s57"
PQ = 116
SIG_ADD = f"buffer_atomic_add {vPV}, {vSIG}, {WS}, {pOFF} offen"
SIG_SET = f"buffer_store_dword {vPV}, {vZ}, {WS}, {pOFF} offen sc1"
def pub_note(a):
    a(f"s_add_u32 {T0}, {sJN}, 1\nv_mov_b32 v{PR}, {T0}\ns_and_b32 {T3}, {T0}, {sW0}\nds_write_b32 {vOWN}, v{PR}")

def gstamp(k):
    return f"s_memtime s[100:101]\ns_waitcnt lgkmcnt(0)\ns_sub_u32 s99, s100, s98\ns_mov_b32 s98, s100\nv_mov_b32 v127, s99\nv_add_u32 v{252 - 0}, v252, v252".replace("v_add_u32 v252, v252, v252", f"v_readlane_b32 s99, v126, {k}\ns_nop 1\nv_readfirstlane_b32 s101, v127\ns_nop 1\ns_add_u32 s99, s99, s101\nv_writelane_b32 v126, s99, {k}")

class Gemm:
    def __init__(self, a, name, tiles, nks, layout, nj, ostride, epilogue, code, progress=False, overlap=0, diag=False, crit=0,
                 pubgap=50, dspan=0.7, pollback=45, stfirst=True, d0=12, ov=2, snake=True, holdpub=False, staged=True):
        self.__dict__.update(locals()); self.nt = len(tiles)
        self.sig = [f"v_mov_b32 {vPV}, {pVAL}", SIG_SET] if progress else [SIG_ADD]
        n = 2 * nks
        ng = self.ng = (nks + 1) // 2
        if overlap: self.gaddr = lambda p, G: ((ng - 1 - G) * 4096 if p == 0 else 163840 - 2048 * nks + G * 4096)
        else: self.gaddr = lambda p, G: p * nks * 2048 + G * 4096
        five = n % 4
        self.slot = [XF, XF + 8, XF + 16, XF + 24, 216] * five + [XF, XF + 8, XF + 16, XF + 24] * ((n - 5 * five) // 4)
        assert len(self.slot) == n
    def dmas(self, p, cold=False):
        out = []; sl = f"s{46 + p}"
        ld = lambda o: f"buffer_load_dwordx4 {vDMA}, {WS}, {T2} offen offset:{o} sc1 lds"
        if self.layout == "Q4":
            for r in range(4):
                o = (r % 2) * 32768 + (r // 2) * 4096
                out.append(f"s_add_u32 {T2}, {sDMA}, {o}\ns_add_u32 m0, {sl}, {p * 65536 + o}\n{ld(0)}")
                out += [ld(1024 * k) for k in range(1, 4)]
            return out
        full = self.nks // 8
        rounds = list(range(full))
        if self.overlap and not cold: rounds = rounds[1:] + rounds[:1]
        for r in rounds:
            if self.overlap and r == 0 and not cold: out.append("s_barrier")
            out.append(f"s_add_u32 {T2}, {sDMA}, {r * 16384}\ns_add_u32 m0, {sl}, {self.gaddr(p, 4 * r)}\n{ld(0)}")
            out += [ld(1024 * k) for k in range(1, 4)]
        for G in range(4 * full, self.ng):
            ins = f"s_add_u32 {T2}, {sDMA}, s96\ns_add_u32 {T2}, {T2}, {G * 4096}\ns_add_u32 m0, s97, {self.gaddr(p, G)}\n{ld(0)}"
            if 2 * G + 1 == self.nks:
                l = self.a.uniq("L_sk"); ins = f"s_cmp_lt_u32 {sW}, 2\ns_cbranch_scc0 {l}\n{ins}\n{l}:"
            out.append(ins)
        return out
    def setup(self):
        a = self.a
        for p in range(2):
            d = 8192 if self.layout == "Q4" else (-4096 if (self.overlap and p == 0) else 4096)
            a(f"s_mul_i32 s{46 + p}, {sW}, {d}")
        a(f"s_mul_i32 s96, {sW}, -3072\ns_lshl_b32 s97, {sW}, 10")
    def rd(self, p, s, tt):
        ad = p * 65536 + tt * 32768 + s * 256 if self.layout == "Q4" else self.gaddr(p, s // 2) + (s % 2) * 2048 + tt * 256
        return f"ds_read_b128 {vr(self.slot[s + p * self.nks] + 4 * tt, 4)}, {vRD[ad >> 16]} offset:{ad & 0xffff}"
    def mf(self, p, s):
        out = []
        seq = [(tt, t) for tt in range(2) for t in range(self.nt)]
        if self.snake: seq = [((tt if t % 2 == 0 else 1 - tt), t) for t in range(self.nt) for tt in range(2)]
        for tt, t in seq:
            for o in self.tiles[t]:
                acc = vr(ACCS[p] + 4 * (tt * self.nt + t), 4); X = vr(self.slot[s + p * self.nks] + 4 * tt, 4); Wt = Wr((s * self.nt + t) * 4)
                A, B = (Wt, X) if o == "T" else (X, Wt)
                out.append(f"v_mfma_f32_16x16x32_bf16 {acc}, {A}, {B}, {'0' if s == 0 else acc}")
        return out
    def shift(self, live):
        t = [f"{pchk(mTHR)}\ns_cselect_b32 {sRDY}, 1, 0\ns_cselect_b32 {sDMA}, {mSRC}, {OOB}", f"s_mov_b32 {sLIVE}, {0 if live else OOB}"]
        x, y = (nL, mL) if self.crit == 0 else (mL, nL)
        t += [f"s_andn2_b32 s23, {x}, {y}", f"s_andn2_b32 s23, s23, {sRDY}", f"s_cmp_le_u32 {sI}, 128\ns_cselect_b32 {sRDY}, {sRDY}, 0"]
        return t
    def outs(self):
        o = [f"s_mul_i32 {eO0}, {cJ}, {self.ostride}", f"s_add_u32 {eO1}, {eO0}, {bO1}", f"s_add_u32 {eO0}, {eO0}, {bO0}"]
        if self.progress: return o + [f"s_mul_i32 {pOFF}, {cL}, {32 * FS}", f"s_add_u32 {pOFF}, {pOFF}, {bPUB}", f"s_add_u32 {pVAL}, {cB}, 1"]
        return o + [f"s_lshl2_add_u32 {pOFF}, {cJ}, {bPUB}"]
    def pub_try(self):
        a = self.a; d = a.uniq("L_pd")
        a(f"s_cmp_lg_u32 {sPEND}, 0\ns_cbranch_scc1 {d}\nds_read_b128 {vr(PQ, 4)}, {vCNT}\ns_waitcnt lgkmcnt(0)")
        a(f"v_min3_u32 v{PQ}, v{PQ}, v{PQ+1}, v{PQ+2}\nv_min_u32 v{PQ}, v{PQ}, v{PQ+3}\nv_cmp_gt_u32 vcc, {T3}, v{PQ}\ns_cbranch_vccnz {d}")
        for x in self.sig + [f"s_mov_b32 {sPEND}, {OOB}"]: a(x)
        a.label(d)
    def spin(self, fb, thr, done, code):
        a = self.a; l = a.uniq("L_sp")
        a("s_mov_b32 s3, 0"); a.label(l)
        self.pub_try()
        a(f"{poll(fb)}\ns_waitcnt lgkmcnt(0)\n{pchk(thr)}\ns_cbranch_scc1 {done}")
        spin_tail(a, l, code)
    def finish(self, p, st, fb):
        a = self.a
        for x in self.outs(): a(x)
        ep = [x for x in self.epilogue(p) if not isinstance(x, tuple)]
        for x in ep: st.emit(x)
        a(poll(fb))
    def refill(self, p, tag):
        a = self.a
        a(f"s_mov_b32 {sDMA}, {nSRC}\n{poll(mFB)}")
        dm = self.dmas(p, True)
        for x in dm: a(x)
        rest = len(dm) - 8 - (1 if self.nks % 2 else 0) if self.staged else 0
        a(f"s_waitcnt vmcnt({rest}) lgkmcnt(0)\ns_barrier")
        for s in range(RINGN - 1): a(self.rd(p, s, 0)); a(self.rd(p, s, 1))
        for x in self.shift(False): a(x)
    def emit(self):
        a = self.a; nm = self.name; nks = self.nks; per = 2 * self.nt
        self.setup()
        a(f"s_mov_b32 {sI}, 0\ns_mov_b32 {sC0}, 0\ns_mov_b32 {sC1}, 0\ns_mov_b32 {cL}, 0\ns_mov_b32 {cB}, 0\ns_mov_b32 {cJ}, 0")
        mv = [f"s_mov_b32 {x}, {y}" for x, y in ((nL, mL), (nB, mB), (nJ, mJ), (nSRC, mSRC), (nTHR, mTHR), (nFB, mFB))]
        for x in self.nj + mv + self.nj: a(x)
        a("s_barrier          ; weight staging done in every wave")
        cnt = 2048 if self.overlap else 163824
        a(f"v_mov_b32 {vCNT}, {cnt}\ns_lshl_b32 {T0}, {sW}, 2\nv_add_u32 {vOWN}, {T0}, {vCNT}\nds_write_b32 {vOWN}, {vZ}\ns_mov_b32 {sPEND}, {OOB}\ns_mov_b32 {sJN}, -1")
        a(f"s_cmp_eq_u32 {sW}, 0\ns_cselect_b32 {sW0}, -1, 0\ns_cselect_b32 {bPUB}, {bPUB}, {OOB}")
        if self.diag in (3, 4): a("v_mov_b32 v126, 0\ns_memtime s[98:99]\ns_waitcnt lgkmcnt(0)")
        a(f"s_branch L_{nm}_ss1")
        primed = lambda p: [I(self.rd(p, s, tt)).w for s in range(RINGN - 1) for tt in range(2)]
        cut = nks - (RINGN - 1); n = cut * per
        tails = []
        for p in range(2):
            a.label(f"L_{nm}_top{p}")
            if self.diag == 2: trace(a, self.diag, sI, 0)
            st = Stream(a, primed(p))
            if self.diag == 3: st.emit(gstamp(0))
            sp = (n - self.pollback) // per
            M = []
            for s in range(cut):
                for k, m in enumerate(self.mf(p, s)): M.append((m, [self.rd(p, s + RINGN - 1, k)] if k < 2 else [], I(self.rd(p, s | 1 if 0 < s < sp else s, 1)).w))
            mark = {}
            note = lambda key, val=None: (lambda: f"; {key}" + " " * (0 * mark.setdefault(key, st.nv)))
            dm = self.dmas(1 - p); end = int(n * self.dspan)
            def barrier(key):
                def f():
                    assert not nks % 2 or dm[-1] in qs[0].it
                    w = f"s_waitcnt vmcnt({min(63, st.nv - (mark[key] if key else 0))})"
                    if self.diag == 4: w = gstamp(0) + "\n" + w + "\n" + gstamp(1)
                    return w + "\ns_barrier"
                return f
            o = self.outs()
            epi = o[:3] + [f"s_max_u32 {x}, {x}, {sLIVE}" for x in (eO0, eO1)] + [note('rot'), ('at', 4)] + self.epilogue(1 - p) + [note('st'), f"s_add_u32 {sJN}, {sJN}, 1"]
            epi += [('gap', self.pubgap - 4), f"s_max_u32 {pOFF}, {pOFF}, {sPEND}", f"s_mov_b32 {sPEND}, 0"] + self.sig[:-1]
            epi += [('gap', 3), ('at', per * 10 if self.overlap else 0), barrier('st'), note('bar')]
            dq = [('until', lambda: 'st' in mark)] if self.stfirst else []
            for k, x in enumerate(dm):
                if x == "s_barrier": dq += [('until', lambda: 'bar' in mark)]; continue
                dq += [('at', self.d0 + k * (end - self.d0) // len(dm))] + split_dma(x)
            q3 = [('until', lambda: 'rot' in mark)] + o[3:] + [f"s_mov_b32 {x}, {y}" for x, y in ((cL, nL), (cB, nB), (cJ, nJ))] + mv
            q3 += [('at', n // 4)] + self.nj + [('at', sp * per), poll(mFB)]
            qs = [Q(dq), Q(epi), Q(q3)]; q0 = Q([('until', lambda: 'bar' in mark), self.sig[-1]])
            if self.diag == 3: qs.append(Q(sum([[('at', k * n // 8), gstamp(1 + k)] for k in range(1, 8)], [])))
            ov = lambda sl: self.ov if 'st' not in mark else 0
            lim = 13 * per
            weave(st, M[:lim], [q0] + qs, over=ov)
            if self.staged and 'bar' not in mark: st.emit(barrier(None)())
            weave(st, M[lim:], [q0] + qs, slot0=lim, over=ov)
            assert not any(q.it for q in qs + [q0]), nm
            if self.diag == 3: st.emit(gstamp(9))
            a(f"s_cmp_eq_u32 {sRDY}, 0\ns_cbranch_scc1 L_{nm}_slow{p}")
            tails.append(list(st.ds))
            M = [(m, [], I(self.rd(p, s, 1)).w) for s in range(cut, nks) for m in self.mf(p, s)]
            ew = f"s_waitcnt vmcnt({st.nv - st.lastld}) lgkmcnt(0)\ns_barrier"
            if self.diag == 4: ew = gstamp(0) + "\n" + ew.replace("\n", "\n" + gstamp(2) + "\n") + "\n" + gstamp(3)
            nx = [('at', 2), ew]
            for s in range(RINGN - 1): nx += [('at', s * per + 1)] + [self.rd(1 - p, s, tt) for tt in range(2)]
            qs = [Q(nx), Q([('at', 3)] + self.shift(True))]
            weave(st, M, qs); flush(st, qs)
            a(f'; model cycles {st.cyc}')
            a(f"s_cmp_eq_u32 s23, 1\ns_cbranch_scc1 L_{nm}_hold{p}")
        a(f"s_branch L_{nm}_top0")
        for p in range(2):
            a.label(f"L_{nm}_slow{p}")
            if self.diag == 4: a(gstamp(0))
            if self.diag == 2: trace(a, self.diag, sI, 3)
            st = Stream(a, tails[p])
            for s in range(cut, nks):
                for m in self.mf(p, s): st.emit(m)
            a("s_waitcnt lgkmcnt(0)")
            self.finish(p, st, nFB)
            a("s_waitcnt vmcnt(0)"); pub_note(a); self.pub_try(); self.pub_try()
            a(f"s_cmp_gt_u32 {sI}, 129\ns_cbranch_scc1 L_{nm}_done\ns_waitcnt lgkmcnt(0)\n{pchk(nTHR)}\ns_cbranch_scc1 L_{nm}_sd{p}")
            a.label(f"L_{nm}_ss{p}")
            self.spin(nFB, nTHR, f"L_{nm}_sd{p}", self.code)
            a.label(f"L_{nm}_sd{p}")
            self.refill(1 - p, str(p))
            if self.diag == 3: a(gstamp(10))
            if self.diag == 4: a(gstamp(5))
            a(f"s_cmp_eq_u32 s23, 1\ns_cbranch_scc1 L_{nm}_hs{p}\ns_branch L_{nm}_top{1 - p}")
            a.label(f"L_{nm}_hold{p}")
            if self.diag == 4: a(gstamp(0))
            if self.diag == 2: trace(a, self.diag, sI, 2)
            if not self.holdpub: a(poll(mFB))
            st = Stream(a)
            if self.holdpub: self.finish(p, st, mFB)
            else:
                for x in self.outs() + [x for x in self.epilogue(p) if not isinstance(x, tuple)]: a(x)
                a(f"s_waitcnt lgkmcnt(0)\n{pchk(mTHR)}\ns_cbranch_scc1 L_{nm}_hd{p}\n{poll(mFB)}")
            a("s_waitcnt vmcnt(0)"); pub_note(a); self.pub_try(); self.pub_try()
            a(f"s_waitcnt lgkmcnt(0)\n{pchk(mTHR)}\ns_cbranch_scc1 L_{nm}_hd{p}")
            a.label(f"L_{nm}_hs{p}")
            self.spin(mFB, mTHR, f"L_{nm}_hd{p}", self.code + 20)
            a.label(f"L_{nm}_hd{p}")
            a(f"s_mov_b32 {sRDY}, 1\ns_mov_b32 {sDMA}, {mSRC}\ns_mov_b32 {sLIVE}, {OOB}")
            if self.diag == 3: a(gstamp(10))
            if self.diag == 4: a(gstamp(4))
            a(f"s_branch L_{nm}_top{1 - p}")
        a.label(f"L_{nm}_done")
        a("s_mov_b32 s3, 0"); a.label(f"L_{nm}_dl")
        self.pub_try()
        a(f"s_cmp_lg_u32 {sPEND}, 0\ns_cbranch_scc1 L_{nm}_dd")
        spin_tail(a, f"L_{nm}_dl", self.code + 40)
        a.label(f"L_{nm}_dd")
        end_role(a, self.diag)

def end_role(a, diag):
    if diag in (3, 4, 5):
        a(f"s_lshl_b32 s94, {sXC}, 5\ns_add_u32 s94, s94, {sSLOT}\ns_lshl_b32 s94, s94, 2\ns_add_u32 s94, s94, {sW}\ns_lshl_b32 s94, s94, 8\ns_add_u32 s94, s94, {WS_END}")
        a(f"v_lshrrev_b32 v20, 2, v0\nbuffer_store_dword v126, v20, {WS}, s94 offen")
    elif diag:
        a(f"s_memrealtime s[92:93]\ns_memtime s[94:95]\ns_waitcnt lgkmcnt(0)\ns_sub_u32 s92, s92, s90\ns_sub_u32 s93, s94, s100")
        a(f"s_lshl_b32 s94, {sXC}, 5\ns_add_u32 s94, s94, {sSLOT}\ns_lshl_b32 s94, s94, 2\ns_add_u32 s94, s94, {sW}\ns_lshl_b32 s94, s94, 4\ns_add_u32 s94, s94, {DIAG}")
        a(f"v_mov_b32 v20, s92\nv_mov_b32 v21, s98\nv_mov_b32 v22, {sU}\nv_mov_b32 v23, s93\nv_mov_b32 v24, 0\nbuffer_store_dwordx4 v[20:23], v24, {WS}, s94 offen")
    a("s_endpgm")
def mark_start(a, diag):
    if diag: a("s_memrealtime s[98:99]\ns_memtime s[100:101]\ns_waitcnt lgkmcnt(0)\ns_sub_u32 s98, s98, s90")

def set_mask(a, m):
    for k in range(4): a(f"s_mov_b32 s{24 + k}, {hex((m >> (32 * k)) & 0xffffffff)}")
cvt = lambda T, A, k: f"v_cvt_pk_bf16_f32 v{T + k}, v{A + 2*k}, v{A + 2*k + 1}"

def slices(a, idx, b1, b2):
    a(f"s_cmp_gt_u32 {idx}, {b1}\ns_cselect_b32 {T0}, 8, 0\ns_cmp_gt_u32 {idx}, {b2}\ns_cselect_b32 {T0}, 16, {T0}")
    a(f"s_cmp_eq_u32 {idx}, {b1}\ns_cselect_b32 {T1}, 16, 8\ns_cmp_eq_u32 {idx}, {b2}\ns_cselect_b32 {T1}, 16, {T1}")
    sig_lanes(a, T0, T1)

def role_PJ(a, mask, diag, opt):
    a.label("L_role_PJ")
    lane_consts(a, "Q4"); set_mask(a, mask)
    own_counters(a, G_PJ, sU); a(f"s_mov_b32 {sNP}, 8")
    hd, kd, dt = "s48", "s51", "s56"
    a(f"s_and_b32 {hd}, {sU}, 31\ns_lshr_b32 {kd}, {sU}, 5\ns_lshl_b32 {dt}, {kd}, 2\ns_add_u32 {dt}, {dt}, {sW}")
    a(f"s_mul_i32 {T0}, {hd}, {FS}\ns_lshl_b32 {T1}, {kd}, 2\ns_add_u32 {T0}, {T0}, {T1}\ns_add_u32 {bPUB}, {T0}, {F_KV}")
    a(f"s_lshl_b32 {T0}, {hd}, 13\ns_lshl_b32 {T1}, {dt}, 10\ns_add_u32 {bO1}, {T0}, {T1}\ns_add_u32 {bO1}, {bO1}, {VX}")
    a(f"s_lshl_b32 {T1}, {sW}, 11\ns_add_u32 {bO0}, {T0}, {T1}\ns_mul_i32 {T1}, {kd}, {QX - KX}\ns_add_u32 {bO0}, {bO0}, {T1}\ns_add_u32 {bO0}, {bO0}, {KX}")
    a(f"s_lshl_b32 {T0}, {sW}, 13\ns_add_u32 {bSRC}, {T0}, {XN}")
    a(f"buffer_store_dword {vZ}, {vZ}, {WS}, {bPUB} offen sc1\ns_add_u32 {T0}, {bPUB}, {32 * FS}\nbuffer_store_dword {vZ}, {vZ}, {WS}, {T0} offen sc1")
    stage_addrs(a, 8192)
    arrive(a)
    a(f"s_cmp_eq_u32 {kd}, 0\ns_cselect_b32 s8, s{P_WK}, s{P_WQ}\ns_cselect_b32 s9, s{P_WK+1}, s{P_WQ+1}\ns_mov_b32 s10, {8 * MB}\ns_mov_b32 s11, 0x20000")
    srd(a, 52, P_WV, 8 * MB)
    a(f"s_lshl_b32 {T0}, {hd}, 8\ns_lshl_b32 {T1}, {sW}, 6\ns_add_u32 s49, {T0}, {T1}\ns_lshl_b32 {T1}, {dt}, 5\ns_add_u32 s50, {T0}, {T1}")
    U = pair_units("s[8:11]", "s49", 8192, 32, 3, 0, "A")
    for s2 in range(16):
        U.append(([("s[52:55]", "v32", "s50", 32 * (2 * s2 + k) * 8192) for k in range(2)],
                  [(((2 * s2 + k) * 3 + 2) * 4 + 2 * u, "v36", k * 1024 + u * 128) for k in range(2) for u in range(2)]))
    load_weights(a, U, opt.get('pol_PJ', ''))
    wait_start(a, 10); mark_start(a, diag)
    def epi(p):
        o = []; A = ACCS[p]
        for tt in range(2):
            o += [cvt(TM + 4 * tt, A + 12 * tt, k) for k in range(4)]
            o.append(f"buffer_store_dwordx4 {vr(TM + 4 * tt, 4)}, {vL16}, {WS}, {eO0} offen offset:{tt * 1024} sc1")
        o += [cvt(TM + 8 + 2 * tt, A + 4 * (tt * 3 + 2), k) for tt in range(2) for k in range(2)]
        o.append(f"buffer_store_dwordx4 {vr(TM + 8, 4)}, {vL16}, {WS}, {eO1} offen sc1")
        return o
    Gemm(a, "PJ", ["T", "T", "N"], 32, "Q4", next_job(8 * MB, 65536, True), 1 << 18, epi, 11, progress=True, diag=diag, crit=1, **dict(dict(ov=0), **opt.get("PJ", {}))).emit()

def role_GU(a, mask, diag, opt):
    a.label("L_role_GU")
    lane_consts(a, "Q4"); set_mask(a, mask)
    own_counters(a, G_GU, sU); a(f"s_mov_b32 {sNP}, 8\ns_mov_b32 {bPUB}, {CB + G_DN * FS}")
    slices(a, sU, 18, 37)
    a(f"s_lshl_b32 {T0}, {sU}, 2\ns_add_u32 {T0}, {T0}, {sW}\ns_lshl_b32 s49, {T0}, 5\ns_lshl_b32 {T0}, {T0}, 10\ns_add_u32 {bO0}, {T0}, {HB}\ns_mov_b32 {bO1}, 0")
    a(f"s_lshl_b32 {T0}, {sW}, 13\ns_add_u32 {bSRC}, {T0}, {XN + 4 * MB}")
    stage_addrs(a, 7168)
    arrive(a)
    srd(a, 8, P_WG, 7 * MB); srd(a, 52, P_WU, 7 * MB)
    U = [([(S, "v32", "s49", 32 * s * 7168) for S in ("s[8:11]", "s[52:55]")],
          [((s * 2 + t) * 4 + 2 * u, "v36", t * 1024 + u * 128) for t in range(2) for u in range(2)]) for s in range(32)]
    if opt.get('late_w', 0): wait_start(a, 12)
    load_weights(a, U, opt.get('pol_GU', ''))
    if not opt.get('late_w', 0): wait_start(a, 12)
    mark_start(a, diag)
    k0 = -2 * math.log2(math.e) * math.sqrt(2 / math.pi)
    a(f"s_mov_b32 s50, {hex(f2u(k0 * 0.044715))}\ns_mov_b32 s51, s50\nv_mov_b32 v10, {hex(f2u(k0))}")
    def epi(p):
        A = ACCS[p]; o = []
        prs = [(A + 8 * tt + 2 * k, A + 8 * tt + 4 + 2 * k, TM + 4 * tt + 2 * k) for tt in range(2) for k in range(2)]
        g = [A + 8 * tt + k for tt in range(2) for k in range(4)]
        o += [f"v_mul_f32 v{TM + k}, v{g[k]}, v{g[k]}" for k in range(8)]
        o += [f"v_fma_f32 v{TM + k}, v{TM + k}, s50, v10" for k in range(8)]
        o += [f"v_mul_f32 v{TM + k}, v{TM + k}, v{g[k]}" for k in range(8)]
        o += [f"v_exp_f32 v{TM + k}, v{TM + k}" for k in range(8)]
        o += [f"v_mul_f32 v{TM + 8 + k}, v{g[k]}, v{g[k] + 4}" for k in range(8)]
        o += [f"v_add_f32 v{TM + k}, 1.0, v{TM + k}" for k in range(8)]
        o += [f"v_rcp_f32 v{TM + k}, v{TM + k}" for k in range(8)]
        o += [f"v_mul_f32 v{TM + k}, v{TM + k}, v{TM + 8 + k}" for k in range(8)]
        o += [cvt(TM + 16, TM, k) for k in range(4)] + [('gap', 1)]
        o += [f"v_permlane16_swap_b32 v{TM + 16}, v{TM + 18}", f"v_permlane16_swap_b32 v{TM + 17}, v{TM + 19}"]
        o.append(f"buffer_store_dwordx4 {vr(TM + 16, 4)}, {vL16}, {WS}, {eO0} offen sc1")
        return o
    Gemm(a, "GU", ["T", "T"], 32, "Q4", next_job(8 * MB, 65536, False), HS, epi, 13, diag=diag, **dict(dict(stfirst=False, d0=1, ov=3), **opt.get('GU', {}))).emit()

def role_P(a, nm, mask, diag, opt):
    wo = nm == "WO"
    nks = 43 if wo else 38
    a.label("L_role_" + nm)
    lane_consts(a, "AL"); set_mask(a, mask)
    sl, cg, k0 = "s48", "s49", "s50"
    a(f"s_lshr_b32 {sl}, {sU}, 3\ns_and_b32 {cg}, {sU}, 7")
    a(f"s_mul_i32 {k0}, {sl}, 43\ns_min_u32 {k0}, {k0}, 85" if wo else f"s_mul_i32 {k0}, {sl}, 37")
    own_counters(a, G_WO if wo else G_DN, sU)
    a(f"s_and_b32 {sNP}, {sl}, 1\ns_add_u32 {sNP}, {sNP}, {11 if wo else 19}")
    a(f"s_mov_b32 {bPUB}, {CB + (G_LA if wo else G_LB) * FS}")
    sig_lanes(a, 0, 8)
    a(f"s_lshl_b32 {T0}, {k0}, 11\ns_lshl_b32 {T1}, {sW}, 12\ns_add_u32 {bSRC}, {T0}, {T1}\ns_add_u32 {bSRC}, {bSRC}, {OB if wo else HB}")
    a(f"s_lshl_b32 {T0}, {sl}, 16\ns_lshl_b32 {T1}, {cg}, 10\ns_add_u32 {T0}, {T0}, {T1}\ns_lshl_b32 {T1}, {sW}, 8\ns_add_u32 {T0}, {T0}, {T1}\ns_add_u32 {bO0}, {T0}, {PW if wo else PD}")
    a(f"v_bfe_u32 v21, v20, 2, 2\nv_lshlrev_b32 v21, 13, v21\nv_lshrrev_b32 v22, 4, v20\nv_lshl_add_u32 v21, v22, 6, v21\nv_and_b32 v22, 3, v20\nv_lshl_add_u32 {vOUT}, v22, 4, v21")
    stage_addrs(a, 2048)
    if wo:
        l = a.uniq("L_np")
        a(f"s_mov_b32 s56, 1\ns_cmp_lg_u32 {sU}, 0\ns_cbranch_scc1 {l}")
        probe_near(a, "s56", opt.get("place", 1) == 1)
        a.label(l)
    arrive(a, "s56" if wo else "1")
    srd(a, 8, P_WO if wo else P_WD, (8 if wo else 7) * MB)
    a(f"s_lshl_b32 {T0}, {k0}, 16\ns_lshl_b32 {T1}, {cg}, 8\ns_add_u32 {T0}, {T0}, {T1}\ns_lshl_b32 {T1}, {sW}, 6\ns_add_u32 s51, {T0}, {T1}")
    if opt.get('late_w', 0): wait_start(a, 14)
    load_weights(a, pair_units("s[8:11]", "s51", 2048, nks, 2, 0, "O" if wo else "A"), opt.get('pol_' + nm, ''))
    l = a.uniq("L_z")
    a(f"s_cmp_lt_u32 {sl}, {2 if wo else 1}\ns_cbranch_scc1 {l}")
    for r in range(8): a(f"v_accvgpr_write_b32 a{r}, 0")
    a.label(l)
    if not opt.get('late_w', 0): wait_start(a, 14)
    mark_start(a, diag)
    a(f"s_add_u32 {bO1}, {bO0}, 32768")
    def epi(p):
        o = []
        for tt in range(2):
            o += [cvt(TM + 4 * tt, ACCS[p] + 8 * tt, k) for k in range(4)]
            o.append(f"buffer_store_dwordx4 {vr(TM + 4 * tt, 4)}, {vOUT}, {WS}, {(eO0, eO1)[tt]} offen sc1")
        return o
    nj = next_job(16 * MB, 262144, False) if wo else next_job(64 * HS, HS, False)
    Gemm(a, nm, ["T", "T"], nks, "AL", nj, 192 * 1024, epi, 15 if wo else 16, overlap=6 if wo else 0, diag=diag, **dict(dict(pubgap=36), **opt.get(nm, {}))).emit()
```

```python
from role_g import *

def role_AT(a, diag, opt, sel=None):
    a.label("L_role_AT")
    lane_consts(a, "AL")
    hd, ly, sB = "s48", "s49", "s21"
    bKX, bKVM, sF, sNC, sC = "s50", "s51", "s52", "s53", "s54"
    dKVM, sK, sQ, sV, sT, sO, sFR = "s59", "s61", "s62", "s63", "s65", "s66", "s67"
    vKM, vVM, vF8, vCHK = "v9", "v10", "v11", "v16"
    FK, SENT, CI, KM, VM = 17, 24, 28, 36, 52
    S = [68, 76]; P = [88, 92]; MX = [100, 104]; OO = [108, 140]; OT = 172; PV2 = 12
    QF = lambda q, t: ar(8 * q + 4 * t, 4); KF = lambda q, tt: ar(32 + 8 * q + 4 * tt, 4); VF = lambda d, n=4: ar(64 + 4 * d, n)
    a(f"s_lshr_b32 {T2}, {sW}, 1\ns_lshl_b32 {hd}, {sU}, 1\ns_add_u32 {hd}, {hd}, {T2}\ns_and_b32 {ly}, {sW}, 1")
    a(f"s_mul_i32 {T3}, {ly}, {32 * FS}\ns_mul_i32 {T0}, {hd}, {FS}\ns_add_u32 {T0}, {T0}, {T3}\ns_add_u32 {sF}, {T0}, {F_KV}\ns_add_u32 {sFR}, {T0}, {F_R}")
    a(f"s_lshl_b32 {T0}, {hd}, 13\ns_lshl_b32 {T1}, {ly}, 24\ns_add_u32 {T0}, {T0}, {T1}\ns_add_u32 {bKX}, {T0}, {KX}\ns_add_u32 {bO0}, {T0}, {OB}")
    a(f"s_lshl_b32 {T0}, {sU}, 14\ns_lshl_b32 {T1}, {T2}, 12\ns_add_u32 {T0}, {T0}, {T1}\ns_lshl_b32 {T1}, {ly}, 23\ns_add_u32 {T0}, {T0}, {T1}\ns_add_u32 {bKVM}, {T0}, {KVM + (sel or 0) * 8192}")
    a(f"v_mov_b32 {vOUT}, v19\nv_mov_b32 v22, 0x40000000\nv_lshrrev_b32 v23, 4, v20\nv_and_b32 v21, 15, v20       ; g, m")
    a(f"v_lshlrev_b32 v18, 7, v23\nv_lshl_add_u32 v18, v21, 4, v18\nv_cmp_gt_u32 vcc, 8, v21\nv_cndmask_b32 {vKM}, v22, v18, vcc")
    a(f"v_add_u32 v18, 2048, {vL16}\nv_cmp_gt_u32 vcc, 32, v20\nv_cndmask_b32 {vVM}, v22, v18, vcc")
    a(f"v_mov_b32 v22, 0xff800000")
    for e in range(4): a(f"v_cndmask_b32 v{CI + 4 + e}, v22, {vZ}, vcc\nv_mov_b32 v{SENT + e}, -1")
    a(f"v_lshlrev_b32 v23, 2, v23")
    for e in range(4): a(f"v_add_u32 v18, {e}, v23\nv_cmp_le_u32 vcc, v18, v21\nv_cndmask_b32 v{CI + e}, v22, {vZ}, vcc")
    c = 128 ** -0.5 * math.log2(math.e)
    a(f"s_mov_b32 {sC}, {hex(f2u(c))}\ns_mov_b32 {sNC}, {hex(f2u(-c))}\ns_mov_b32 {sB}, 0")
    slices(a, hd, 10, 21)
    a(f"s_lshl_b32 {bPUB}, {ly}, 8\ns_add_u32 {bPUB}, {bPUB}, {CB + G_WO * FS}\ns_mov_b32 {pOFF}, {OOB}")
    pub = f"{SIG_ADD}\ns_mov_b32 {pOFF}, {OOB}"
    a(f"buffer_store_dword {vZ}, {vZ}, {WS}, {sFR} offen sc1")
    arrive(a)
    wait_start(a, 17)
    if sel is None: a(f"v_readfirstlane_b32 {T0}, v20\ns_lshr_b32 {T0}, {T0}, 16\ns_and_b32 {T0}, {T0}, 1\ns_lshl_b32 {T0}, {T0}, 13\ns_add_u32 {bKVM}, {bKVM}, {T0}")
    mark_start(a, diag)
    regs = list(range(KM, KM + 32))
    chk = [f"v_max3_u32 {vCHK}, v{regs[0]}, v{regs[1]}, v{regs[2]}", f"v_max_u32 {vCHK}, {vCHK}, v{regs[3]}"]
    chk += [f"v_max3_u32 {vCHK}, {vCHK}, v{regs[k]}, v{regs[k+1]}" for k in range(4, 32, 2)] + [f"v_cmp_eq_u32 vcc, -1, {vCHK}"]
    ldm = [f"buffer_load_dwordx4 {vr(KM + 4 * q, 4)}, {vKM}, {WS}, {dKVM} offen offset:{q * 512} sc1" for q in range(4)] + \
          [f"buffer_load_dwordx4 {vr(VM + 4 * q, 4)}, {vVM}, {WS}, {dKVM} offen offset:{q * 512} sc1" for q in range(4)]
    ldF = f"s_buffer_load_dwordx2 s[68:69], {WS}, {sF} glc"
    ckF = f"s_waitcnt lgkmcnt(0)\ns_min_u32 s68, s68, s69\ns_cmp_ge_u32 s68, {sT}"
    fetch = []
    for base, R_ in ((sQ, 0), (sK, 32), (sV, 64)):
        for k in range(8):
            fetch.append((f"s_add_u32 {base}, {base}, 4096\n" if k == 4 else "") + f"buffer_load_dwordx4 {ar(R_ + 4 * k, 4)}, {vL16}, {WS}, {base} offen offset:{(k % 4) * 1024} sc1")
    def softmax(t):
        n = 8 + 4 * t; s = list(range(S[t], S[t] + n)); m = MX[t]; o = []
        o += [f"v_max3_f32 v{m}, v{s[0]}, v{s[1]}, v{s[2]}", f"v_max3_f32 v{m+1}, v{s[3]}, v{s[4]}, v{s[5]}", f"v_max3_f32 v{m+2 if not t else m}, v{m}, v{s[6]}, v{s[7]}"]
        if t: o += [f"v_max3_f32 v{m+1}, v{m+1}, v{s[8]}, v{s[9]}", f"v_max3_f32 v{m+2}, v{m}, v{s[10]}, v{s[11]}"]
        def cross(op):
            return [f"{op} v{m}, v{m+2}, v{m+1}", f"{op} v{m+1}, v{m+2}, v{m+1}", ('gap', 1), f"v_permlane16_swap_b32 v{m}, v{m+1}", f"{op} v{m+2}, v{m}, v{m+1}", f"{op} v{m+3}, v{m}, v{m+1}",
                    ('gap', 1), f"v_permlane32_swap_b32 v{m+2}, v{m+3}", f"{op} v{m}, v{m+2}, v{m+3}"]
        o += cross("v_max_f32") + [f"v_mul_f32 v{m}, {sNC}, v{m}"]
        o += [f"v_fma_f32 v{r}, v{r}, {sC}, v{m}" for r in s] + [f"v_exp_f32 v{r}, v{r}" for r in s]
        o += [f"v_add_f32 v{m+1}, v{s[0]}, v{s[1]}", f"v_add_f32 v{m+2}, v{s[2]}, v{s[3]}"]
        o += [f"v_add_f32 v{m + 1 + k % 2}, v{m + 1 + k % 2}, v{s[k]}" for k in range(4, n)]
        o += cross("v_add_f32") + [f"v_rcp_f32 v{m}, v{m}"]
        o += [f"v_mul_f32 v{r}, v{r}, v{m}" for r in s] + [cvt(P[t], S[t], k) for k in range(n // 2)]
        return o
    def out(t, pp):
        T = OT + 4 * (pp + 4 * t)
        return [cvt(T, OO[t] + 8 * pp, k) for k in range(4)] + [f"buffer_store_dwordx4 {vr(T, 4)}, {vOUT}, {WS}, {(sO, T3)[pp // 2]} offen offset:{(pp % 2) * 2048 + t * 256} sc1"]
    E = frozenset()
    a.label("L_AT_slow")
    a(f"s_add_u32 {sT}, {sB}, 1\ns_mov_b32 s3, 0")
    a.label("L_AT_sp")
    a(f"{ldF}\n{ckF}\ns_cbranch_scc1 L_AT_fetch")
    spin_tail(a, "L_AT_sp", 20)
    a.label("L_AT_fetch")
    a(f"s_lshl_b32 {sO}, {sB}, 18\ns_add_u32 {sK}, {sO}, {bKX}\ns_add_u32 {sQ}, {sK}, {QX - KX}\ns_add_u32 {sV}, {sK}, {VX - KX}\ns_add_u32 {sO}, {sO}, {bO0}\ns_add_u32 {T3}, {sO}, 4096")
    a(f"s_and_b32 {dKVM}, {sB}, 31\ns_lshl_b32 {dKVM}, {dKVM}, 18\ns_add_u32 {dKVM}, {dKVM}, {bKVM}\ns_and_b32 {T0}, {sB}, 8\ns_lshl_b32 {T0}, {T0}, 10\ns_xor_b32 {dKVM}, {dKVM}, {T0}\ns_mov_b32 s3, 0")
    np_ = opt.get('at_pub', 6)
    for k, x in enumerate(fetch):
        if k == np_: a(f"s_waitcnt vmcnt({np_})\n{pub}")
        a(x)
    a.label("L_AT_km")
    a(f"s_buffer_load_dword s70, {WS}, {sFR} glc\ns_waitcnt lgkmcnt(0)\ns_cmp_gt_u32 s70, {sB}\ns_cbranch_scc1 L_AT_go")
    spin_tail(a, "L_AT_km", 19)
    a.label("L_AT_go")
    for x in ldm: a(x)
    a("s_waitcnt vmcnt(4)")
    trace(a, diag, sB, 0, (250, 251))
    st = Stream(a)
    def smf(t):
        M = []
        for q in range(4):
            for k in range(2 + t):
                mem = k == 1 + t
                A = vr(KM + 4 * q, 4) if mem else KF(q, k)
                C = vr(S[t] + 4 * k, 4) if q else (vr(CI + 4, 4) if mem else (vr(CI, 4) if k == t else "0"))
                M.append((f"v_mfma_f32_16x16x32_bf16 {vr(S[t] + 4 * k, 4)}, {A}, {QF(q, t)}, {C}", [], E))
        return M
    def pvf(t):
        x = lambda d: (f"v_mfma_f32_16x16x32_bf16 {vr(OO[1] + 4 * d, 4)}, {VF(d)}, {vr(P[1], 4)}, 0" if t else f"v_mfma_f32_16x16x16_bf16 {vr(OO[0] + 4 * d, 4)}, {VF(d, 2)}, {vr(P[0], 2)}, 0")
        m = lambda d: f"v_mfma_f32_16x16x16_bf16 {vr(OO[t] + 4 * d, 4)}, {vr(VM + 2 * d, 2)}, {vr(P[t] + 2 + 2 * t, 2)}, {vr(OO[t] + 4 * d, 4)}"
        seq = [x(d) for d in range(4)]
        for d in range(4): seq += [x(d + 4), m(d)]
        return [(y, [], E) for y in seq + [m(d) for d in range(4, 8)]]
    ov = lambda sl: 2
    q0 = Q([ldF, f"s_add_u32 {sT}, {sB}, 2"]); weave(st, smf(0), [q0]); flush(st, [q0])
    q0 = Q([('at', 6)] + softmax(0)); weave(st, smf(1), [q0], over=ov)
    q1 = Q(softmax(1))
    k = 0
    while q0.it:
        for q in ([q0, q0, q1] if k > 2 else [q0]):
            while q.it and isinstance(q.it[0], tuple): q.it.pop(0)
            if q.it: st.emit(q.it.pop(0))
        k += 1
    a("s_waitcnt vmcnt(0)")
    weave(st, pvf(0), [q1], over=ov); flush(st, [q1])
    q0 = Q(sum([out(0, pp) for pp in range(4)], []) + [('at', 14)] + out(1, 0)); weave(st, pvf(1), [q0], over=lambda sl: 1); flush(st, [q0])
    for pp in range(1, 4):
        for x in out(1, pp): a(x)
    a(f"s_lshl2_add_u32 {pOFF}, {sB}, {bPUB}\ns_add_u32 {sB}, {sB}, 1")
    trace(a, diag, sB, 1, (250, 251))
    a(f"s_cmp_eq_u32 {sB}, 64\ns_cbranch_scc1 L_AT_done\n{ckF}\ns_cbranch_scc1 L_AT_fetch")
    a(f"s_waitcnt vmcnt(0)\n{pub}\ns_branch L_AT_slow")
    a.label("L_AT_done")
    a(f"s_waitcnt vmcnt(0)\n{pub}")
    end_role(a, diag)

def ln_finish(a, X, st_xn, T, pairs=True):
    if pairs: a("v_add_f32 v8, v8, v9\nv_add_f32 v9, v10, v11")
    for r in (4, 8):
        a(f"v_add_f32_dpp v8, v8, v8 row_ror:{r} row_mask:0xf bank_mask:0xf\nv_add_f32_dpp v9, v9, v9 row_ror:{r} row_mask:0xf bank_mask:0xf")
    for sw in ("16", "32"):
        a(f"v_mov_b32 v10, v8\nv_mov_b32 v11, v9\nv_permlane{sw}_swap_b32 v8, v10\nv_permlane{sw}_swap_b32 v9, v11\nv_add_f32 v8, v8, v10\nv_add_f32 v9, v9, v11")
    inv = hex(f2u(1 / 1024))
    a(f"v_mul_f32 v8, {inv}, v8\nv_mul_f32 v9, {inv}, v9\nv_fma_f32 v9, -v8, v8, v9\nv_max_f32 v9, 0, v9\nv_add_f32 v9, {hex(f2u(1e-5))}, v9\nv_rsq_f32 v10, v9\nv_mul_f32 v8, v8, v10")
    for i in range(8):
        for k in range(4): a(f"v_pk_fma_f32 {vr(X + 8*i + 2*k, 2)}, {vr(X + 8*i + 2*k, 2)}, v[10:11], v[8:9] op_sel_hi:[1,0,0] neg_lo:[0,0,1] neg_hi:[0,0,1]")
        for k in range(4): a(cvt(T + 4 * (i % 4), X + 8*i, k))
        a(st_xn(i, T + 4 * (i % 4)))
def ln_stats(X, i):
    out = []
    for k in range(4):
        x = vr(X + 8*i + 2*k, 2)
        if i == 0 and k == 0: out += [f"v_pk_add_f32 v[8:9], {x}, 0 op_sel_hi:[1,0]", f"v_pk_mul_f32 v[10:11], {x}, {x}"]
        else: out += [f"v_pk_add_f32 v[8:9], v[8:9], {x}", f"v_pk_fma_f32 v[10:11], {x}, {x}, v[10:11]"]
    return out
def unpack(X, R, i):
    return [f"v_lshlrev_b32 v{X + 8*i + 2*k}, 16, v{R + 4*i + k}\nv_and_b32 v{X + 8*i + 2*k + 1}, 0xffff0000, v{R + 4*i + k}" for k in range(4)]

def stream_in(a, sQ, ptr, n, vaddr):
    srd(a, 52, ptr, n * 512 * 1024)
    a(f"s_lshl_b32 {T3}, {sQ}, 10")
    for k in range(n): a(f"buffer_load_dwordx4 {vr(240 + 4 * (k % 4), 4)}, {vaddr}, s[52:55], {T3} offen\ns_add_u32 {T3}, {T3}, {512 * 1024}")

def ln0(a, sQ, pf=0):
    X, R, T = 128, 192, 224
    srd(a, 8, P_X, 4 * MB)
    a(f"v_and_b32 v2, 3, v0\nv_lshlrev_b32 v2, 11, v2\nv_lshrrev_b32 v3, 2, v0\nv_lshl_add_u32 v2, v3, 4, v2\nv_lshlrev_b32 v3, 4, v0")
    a(f"s_lshl_b32 {T0}, {sQ}, 13\ns_add_u32 {T1}, {T0}, {XN}\ns_add_u32 {T2}, {T1}, 4096")
    for i in range(8): a(f"buffer_load_dwordx4 {vr(R + 4*i, 4)}, v2, s[8:11], {T0} offen offset:{i * 256}")
    if pf: stream_in(a, sQ, P_WQ, 16, "v3"); stream_in(a, sQ, P_WK, 16, "v3")
    for i in range(8):
        a(f"s_waitcnt vmcnt({7 - i + (32 if pf else 0)})")
        for x in unpack(X, R, i) + ln_stats(X, i): a(x)
    ln_finish(a, X, lambda i, r: f"buffer_store_dwordx4 {vr(r, 4)}, v3, {WS}, {(T1, T2)[i // 4]} offen offset:{(i % 4) * 1024} sc1", T)
    if pf:
        a("s_waitcnt vmcnt(24)"); stream_in(a, sQ, P_WV, 16, "v3"); stream_in(a, sQ, P_WO, 16, "v3")
    if pf > 1:
        for ptr in (P_WG, P_WU, P_WD): a("s_waitcnt vmcnt(32)"); stream_in(a, sQ, ptr, 14, "v3")
        a("s_waitcnt vmcnt(16)")

def role_LN(a, diag, opt):
    a.label("L_role_LN")
    X, R, P, T, SEL = 16, 80, 112, 208, 240
    S1, S2, ONES, DG = 224, 228, 232, 236
    vRES, vXO, vPRV, vOWN = "v6", "v7", "v4", "v1"
    sB, bP, bR, stR, bX, stX, bN, bF, fB = "s21", "s22", "s23", "s24", "s25", "s26", "s27", "s28", nFB
    a("v_mov_b32 v20, v0\nv_lshlrev_b32 v0, 4, v20\nv_mov_b32 v3, 0")
    a(f"s_cmp_eq_u32 {sW}, 1\ns_cselect_b32 {T0}, 64, 56")
    sig_lanes(a, 0, T0)
    a(f"s_and_b32 {T0}, {sW}, 1\ns_lshl_b32 {T0}, {T0}, 3\ns_add_u32 {T0}, {T0}, {sU}")
    own_counters(a, G_LA, T0)
    a(f"v_and_b32 v21, 3, v20\nv_lshlrev_b32 v21, 11, v21\nv_lshrrev_b32 v22, 2, v20\nv_lshl_add_u32 v21, v22, 4, v21")
    a(f"v_mov_b32 {vRES}, v21\nv_and_b32 v22, 3, v20\nv_lshl_add_u32 {vXO}, v22, 6, v21\nv_add_u32 {vXO}, 1024, {vXO}")
    a(f"s_lshl_b32 {T3}, {sU}, 13\ns_lshl_b32 {T2}, {sW}, 22")
    srd(a, 8, P_X, 4 * MB)
    a(f"s_add_u32 {bR}, {T2}, {XR - 4 * MB}\ns_cmp_eq_u32 {sW}, 0\ns_cselect_b32 {bR}, 0, {bR}\ns_add_u32 {bR}, {bR}, {T3}")
    srd(a, 52, P_OUT, 4 * MB)
    a(f"s_add_u32 {bX}, {T2}, {XR}\ns_cmp_eq_u32 {sW}, 3\ns_cselect_b32 {bX}, 0, {bX}\ns_add_u32 {bX}, {bX}, {T3}")
    a(f"s_add_u32 {bN}, {T2}, {XN + 4 * MB}\ns_add_u32 {bN}, {bN}, {T3}")
    a(f"s_cmp_eq_u32 {sW}, 1\ns_cselect_b32 {bF}, 0, {(G_GU - G_PJ) * FS}\ns_min_u32 {T0}, {sW}, 1\ns_lshl_b32 {T0}, {T0}, 8\ns_add_u32 {bF}, {bF}, {T0}\ns_add_u32 {bF}, {bF}, {CB + G_PJ * FS}")
    a(f"s_and_b32 {T0}, {sW}, 1\ns_lshr_b32 {T1}, {sW}, 1\ns_mul_i32 {bP}, {T0}, {PD - PW}\ns_mul_i32 {fB}, {T1}, {12 * MB}\ns_add_u32 {bP}, {bP}, {fB}\ns_add_u32 {bP}, {bP}, {PW}\ns_add_u32 {bP}, {bP}, {T3}")
    a(f"s_lshl_b32 {T1}, {T1}, 8\ns_add_u32 {fB}, {bCNT}, {T1}")
    for k in range(6): a(f"v_mov_b32 v{SEL + k}, 0")
    a(f"s_mov_b32 {T0}, 0x3f80\ns_mov_b32 {T1}, 0x3f800000")
    for g in range(4):
        for e in range(4): a(f"v_writelane_b32 v{SEL + 2 + e // 2}, {T1 if e % 2 else T0}, {20*g + e}")
    SL = [vr(SEL + 2, 4), vr(SEL, 4)]
    for k in range(4): a(f"v_mov_b32 v{ONES + k}, 0x3f803f80\nv_mov_b32 v{DG + k}, 0")
    for g in range(4):
        for e in range(4): a(f"v_writelane_b32 v{DG + e}, {T1}, {20*g + e}")
    a(f"s_lshl_b32 {T0}, {sW}, 2\nv_mov_b32 {vPRV}, {T0}\nv_add_u32 {vOWN}, 4, {vPRV}\nv_mov_b32 v8, 64\nds_write_b32 {vOWN}, {vZ}\nds_write_b32 {vZ}, v8\ns_waitcnt lgkmcnt(0)")
    arrive(a)
    wait_start(a, 21); mark_start(a, diag)
    a(f"s_mov_b32 {sB}, 0")
    a.label("L_LN_loop")
    a(f"s_add_u32 {nTHR}, {sB}, 1\ns_mov_b32 s3, 0")
    a.label("L_LN_rs")
    a(f"ds_read_b32 v8, {vPRV}\ns_waitcnt lgkmcnt(0)\nv_cmp_gt_u32 vcc, {nTHR}, v8\ns_cbranch_vccz L_LN_rg\ns_sleep 2")
    spin_tail(a, "L_LN_rs", 23)
    a.label("L_LN_rg")
    a(f"s_lshl_b32 {T3}, {sB}, 16\ns_add_u32 {T0}, {T3}, {bR}\ns_mul_i32 {T1}, {sB}, {192 * 1024}\ns_add_u32 {T1}, {T1}, {bP}")
    if opt.get('x_nor'): a(f"s_mov_b32 {T0}, {OOB}")
    a(f"s_cmp_eq_u32 {sW}, 0\ns_cbranch_scc1 L_LN_r0\ns_add_u32 {T2}, {T0}, 4096")
    for i in range(8): a(f"buffer_load_dwordx4 {vr(P + 4*i, 4)}, {vL16}, {WS}, {(T0, T2)[i // 4]} offen offset:{(i % 4) * 1024} sc1")
    a("s_branch L_LN_r1")
    a.label("L_LN_r0")
    for i in range(8): a(f"buffer_load_dwordx4 {vr(P + 4*i, 4)}, {vRES}, s[8:11], {T0} offen offset:{i * 256}")
    a.label("L_LN_r1")
    a(f"s_lshl2_add_u32 s30, {sB}, {fB}\ns_lshl2_add_u32 {pOFF}, {sB}, {bF}")
    for j in range(3):
        for hf in range(2): a(f"s_add_u32 s{40 + 2*j + hf}, {T1}, {j * 65536 + hf * 4096}")
    a(f"s_add_u32 {T0}, {T3}, {bX}\ns_add_u32 {T1}, {T3}, {bN}\ns_add_u32 {T2}, {T1}, 4096\ns_mov_b32 s3, 0")
    if opt.get('x_nox'): a(f"s_mov_b32 {T0}, {OOB}")
    if opt.get('x_nop'):
        for k in range(6): a(f"s_mov_b32 s{40 + k}, {OOB}")
    a(f"s_waitcnt vmcnt(8)\nv_mov_b32 v8, {sB}\nds_write_b32 {vOWN}, v8")
    for i in range(8):
        a(f"s_waitcnt vmcnt({7 - i})")
        if i == 4: a(poll("s30"))
        for x in unpack(X, P, i): a(x)
    a(f"s_waitcnt lgkmcnt(0)\n{pchk(24)}\ns_cbranch_scc1 L_LN_go")
    a.label("L_LN_sp")
    a(f"{poll('s30')}\ns_waitcnt lgkmcnt(0)\n{pchk(24)}\ns_cbranch_scc1 L_LN_go")
    spin_tail(a, "L_LN_sp", 22)
    a.label("L_LN_go")
    trace(a, diag, sB, 0, (250, 251))
    for i in range(8):
        for j in range(3): a(f"buffer_load_dwordx4 {vr(P + 12*i + 4*j, 4)}, {vL16}, {WS}, s{40 + 2*j + i // 4} offen offset:{(i % 4) * 1024} sc1")
    stat = lambda i: [f"v_mfma_f32_16x16x32_bf16 {vr(S1, 4)}, {vr(ONES, 4)}, {vr(R + 4*i, 4)}, {vr(S1, 4) if i else '0'}",
                      f"v_mfma_f32_16x16x32_bf16 {vr(S2, 4)}, {vr(R + 4*i, 4)}, {vr(R + 4*i, 4)}, {vr(S2, 4) if i else '0'}"]
    for i in range(8):
        fl = [cvt(R + 4*(i - 1), X + 8*(i - 1), k) for k in range(4)] if i else []
        for j in range(3):
            a(f"s_waitcnt vmcnt({23 - 3*i - j})")
            for u in range(2):
                acc = vr(X + 8*i + 4*u, 4)
                a(f"v_mfma_f32_16x16x32_bf16 {acc}, {SL[u]}, {vr(P + 12*i + 4*j, 4)}, {acc}")
                if j == 2 and fl: a(fl.pop(0)); a(fl.pop(0))
        if i >= 2:
            for x in stat(i - 2): a(x)
    for x in stat(6) + [cvt(R + 28, X + 56, k) for k in range(4)]: a(x)
    stx = [(f"s_add_u32 {T0}, {T0}, 4096\n" if i == 4 else "") + f"buffer_store_dwordx4 {vr(R + 4*i, 4)}, {vL16}, {WS}, {T0} offen offset:{(i % 4) * 1024} sc1" for i in range(8)]
    a(f"s_add_u32 {sB}, {sB}, 1\ns_cmp_eq_u32 {sW}, 3\ns_cbranch_scc1 L_LN_out")
    for x in stat(7): a(x)
    a(f"v_mul_f32 v8, {hex(f2u(0.25))}, v{S1}")
    a(f"v_mul_f32 v9, v{DG}, v{S2}")
    for k in range(1, 4): a(f"v_fmac_f32 v9, v{DG + k}, v{S2 + k}")
    ln_finish(a, X, lambda i, r: f"buffer_store_dwordx4 {vr(r, 4)}, {vL16}, {WS}, {(T1, T2)[i // 4]} offen offset:{(i % 4) * 1024} sc1", T, pairs=False)
    for x in stx[:4]: a(x)
    a(f"s_waitcnt vmcnt(4)\n{SIG_ADD}")
    for x in stx[4:]: a(x)
    a("s_branch L_LN_nx")
    a.label("L_LN_out")
    for i in range(8): a(f"ds_write_b128 {vXO}, {vr(R + 4*i, 4)} offset:{i * 256}")
    for i in range(8): a(f"ds_read_b128 {vr(P + 4*i, 4)}, {vL16} offset:{1024 + (i // 2) * 2112 + (i % 2) * 1024}")
    for i in range(8):
        if i == 4: a(f"s_add_u32 {T0}, {T0}, 4096")
        a(f"s_waitcnt lgkmcnt({7 - i})\nbuffer_store_dwordx4 {vr(P + 4*i, 4)}, {vL16}, s[52:55], {T0} offen offset:{(i % 4) * 1024}{opt.get('pol_out', ' sc1')}")
    a.label("L_LN_nx")
    trace(a, diag, sB, 1, (250, 251))
    a(f"s_cmp_lt_u32 {sB}, 64\ns_cbranch_scc1 L_LN_loop")
    a(f"s_waitcnt vmcnt(0)\nv_mov_b32 v8, {sB}\nds_write_b32 {vOWN}, v8\ns_waitcnt lgkmcnt(0)")
    end_role(a, diag)
```

```python
from asmgen import *
from layout import *
from weave import *
import math

SPIN = 40000
WS = "s[4:7]"; DBG = "s[12:15]"
sXC, sSLOT, sW = "s16", "s17", "s18"
P_X, P_MEM0, P_WQ, P_WK, P_WV, P_WO, P_WG, P_WU, P_WD, P_OUT = 64, 66, 68, 70, 72, 74, 80, 82, 84, 86

def srd(a, d, ptr, nbytes):
    a(f"s_mov_b32 s{d}, s{ptr}\ns_mov_b32 s{d+1}, s{ptr+1}\ns_mov_b32 s{d+2}, {nbytes}\ns_mov_b32 s{d+3}, 0x20000")

def probe_near(a, dst, other_side=False):
    a("s_waitcnt vmcnt(0)\ns_barrier\nv_mov_b32 v21, 0\ns_mov_b32 s94, -1\ns_mov_b32 s95, -1")
    sk = a.uniq("L_pr")
    a(f"s_cmp_lg_u32 {sW}, 0\ns_cbranch_scc1 {sk}")
    for k in range(12):
        l = a.uniq("L_pl"); c = k % 2
        a(f"s_mov_b32 s92, {PROBE + c * 8192 + (k // 2 % 2) * 4096}\ns_mov_b32 s3, 0\nbuffer_store_dword v21, v21, {WS}, s92 offen sc1")
        a.label(l)
        a(f"s_add_u32 s3, s3, 1\ns_getreg_b32 s93, hwreg(HW_REG_IB_STS, 0, 4)\ns_cmp_lt_u32 s3, 4096\ns_cselect_b32 s93, s93, 0\ns_cmp_lg_u32 s93, 0\ns_cbranch_scc1 {l}")
        a(f"s_waitcnt vmcnt(0)\ns_min_u32 s{94 + c}, s{94 + c}, s3")
    a.label(sk)
    a(f"s_cmp_{'gt' if other_side else 'lt'}_u32 s95, s94\ns_cselect_b32 {dst}, 0x10001, 1")

def arrive(a, val="1"):
    l = a.uniq("L_arr")
    a(f"s_waitcnt vmcnt(0)\ns_barrier\ns_cmp_lg_u32 {sW}, 0\ns_cbranch_scc1 {l}")
    a(f"s_mov_b64 exec, 1\nv_mov_b32 v20, {val}\nv_mov_b32 v21, 4\nbuffer_atomic_add v20, v21, {DBG}, 0 offen\ns_mov_b64 exec, -1")
    a.label(l)

def wait_start(a, code):
    l = a.uniq("L_ws"); d = a.uniq("L_wsd")
    a("s_mov_b32 s3, 0\nv_mov_b32 v21, 4")
    a.label(l)
    a(f"buffer_load_dword v20, v21, {DBG}, 0 offen sc1\ns_waitcnt vmcnt(0)\nv_and_b32 v22, 0xffff, v20\nv_cmp_gt_u32 vcc, 256, v22\ns_cbranch_vccz {d}")
    spin_tail(a, l, code)
    a.label(d)

BACKOFF = 0
def spin_tail(a, loop, code):
    if BACKOFF and code >= 10: a(f"s_sleep {BACKOFF}")
    a(f"s_add_u32 s3, s3, 1\ns_cmp_lt_u32 s3, {SPIN}\ns_cbranch_scc1 {loop}\ns_mov_b32 s3, {code}\ns_branch L_abort")

def trace(a, diag, idx, slot, vt=(126, 127)):
    if diag != 2: return
    a(f"s_memrealtime s[100:101]\ns_lshl_b32 s99, {idx}, 4\ns_add_u32 s99, s99, s91\ns_waitcnt lgkmcnt(0)\ns_sub_u32 s100, s100, s90")
    a(f"v_mov_b32 v{vt[0]}, s100\nv_mov_b32 v{vt[1]}, 0\nbuffer_store_dword v{vt[0]}, v{vt[1]}, {WS}, s99 offen offset:{slot * 4}")

def role_R(a, D, diag=False, sel=0, stamps=False, opt=None):
    opt = opt or {}
    def stamp(k):
        if stamps and stamps is not True:
            a(f"s_memrealtime s[80:81]\ns_cmp_eq_u32 s21, {stamps + (1 if k >= 13 else 0)}\ns_waitcnt lgkmcnt(0)\ns_cselect_b32 s{64+k}, s80, s{64+k}")
        elif stamps: a(f"s_memtime s[80:81]\ns_waitcnt lgkmcnt(0)\ns_sub_u32 s83, s80, s82\ns_add_u32 s{64+k}, s{64+k}, s83\ns_mov_b32 s82, s80")
    gx, i, w = 's2', sSLOT, sW
    j, h, n = "s19", "s20", "s21"
    bX1Lc, bX1Rc, bX1Lp, bX1Rp, bX2s, bX2sv, bX2r, bX2rv, bX3p, bX3c = [f"s{k}" for k in range(22, 32)]
    dX1Lc, dX1Rc, dX1Lp, dX1Rp, dX1Rq, dX2s, dX2sv, dX2r, dX2rv, dX3p, dX3c, dKX, dVX, dKVM, dFLG, dTHR = [f"s{k}" for k in range(32, 48)]
    rX2s, rX2sv, rX3p, rX1L, rX1R, rX1Rq, pFLG, pVAL = [f"s{k}" for k in range(48, 56)]
    mOWN32 = "s[56:57]"; mINJ = "s[58:59]"
    sLO, sHI, sNC, bKV = "s60", "s61", "s62", "s63"
    sCC = "s[8:9]"; mOWN16 = "s[10:11]"; sROT = ["s84", "s85", "s86", "s87"]; qFLG = dFLG; qKVM, qX1Rq, qVAL = "s88", "s89", "s2"
    t0, t1, t2, t3 = "s92", "s93", "s94", "s95"
    bFR, bFKV = "s96", "s97"
    vL16, vX1P, vKS, vQS, vVS, vOP, vKMP, vVMP, vX3C, vWO = [f"v{k}" for k in range(0, 10)]
    vROT = ["v10", "v11", "v12", "v13"]
    vNINF, vSPARE, vRED, vM0, vFO, vCHK = [f"v{k}" for k in range(14, 20)]
    OWN, RING, AQ, AK, AV, KXR, VXR, TMP, SM = 20, 36, 52, 60, 68, 76, 108, 116, 124
    KEEP = RING
    a.label("L_role_R")
    a(f"s_and_b32 {j}, {i}, 1\ns_lshr_b32 {h}, {i}, 1\ns_lshl_b32 {t0}, {gx}, 4\ns_add_u32 {h}, {h}, {t0}")
    a("v_mov_b32 v20, v0                ; lane")
    a(f"v_lshlrev_b32 {vL16}, 4, v20")
    a(f"s_lshl_b32 {t0}, {w}, 8\nv_lshl_add_u32 {vX1P}, v20, 2, {t0}")
    a(f"v_bfe_u32 v21, v20, 3, 1\nv_cmp_eq_u32 s[92:93], {j}, v21      ; own16")
    a(f"v_lshrrev_b32 v21, 5, v20\nv_cmp_eq_u32 {mOWN32}, {j}, v21")
    a(f"v_mov_b32 v22, 0x40000000")
    a(f"v_cndmask_b32 {vKS}, {vL16}, v22, s[92:93]")
    a(f"v_xor_b32 v23, 128, {vL16}\nv_cndmask_b32 {vQS}, v23, v22, s[92:93]")
    a(f"v_and_b32 v24, 0x1f0, {vL16}\nv_cndmask_b32 {vVS}, v24, v22, {mOWN32}\nv_cndmask_b32 {vVMP}, v22, v24, {mOWN32}")
    a(f"v_lshrrev_b32 v25, 4, v20\nv_lshlrev_b32 v25, 7, v25\nv_and_b32 v26, 7, v20\nv_lshl_add_u32 v25, v26, 4, v25     ; g*128+(n&7)*16")
    a(f"v_cndmask_b32 {vOP}, v25, v22, s[92:93]\nv_cndmask_b32 {vKMP}, v22, v25, s[92:93]")
    a(f"v_bfe_u32 v21, v20, 3, 1\nv_lshl_add_u32 {vX3C}, v21, 9, v25")
    a(f"s_lshl_b32 {t2}, {w}, 15\ns_add_u32 {t2}, {t2}, 0x8000\nv_add_u32 {vWO}, {t2}, {vL16}")
    for q in range(4):
        a(f"s_add_u32 {t2}, {w}, {q}\ns_and_b32 {t2}, {t2}, 3\ns_lshl_b32 {sROT[q]}, {t2}, 11\ns_lshl_b32 {t2}, {t2}, 13\nv_add_u32 {vROT[q]}, {t2}, {vL16}")
    a(f"v_mov_b32 {vNINF}, 0xff800000\nv_and_b32 v21, 15, v20\nv_lshlrev_b32 v21, 7, v21\nv_bfe_u32 v22, v20, 4, 1\nv_lshl_add_u32 {vSPARE}, v22, 25, v21")
    a(f"v_lshrrev_b32 v21, 2, v20\nv_lshlrev_b32 v21, 4, v21\nv_bfe_u32 v22, v20, 1, 1\nv_lshl_add_u32 v21, v22, 10, v21\nv_and_b32 v22, 1, v20\nv_lshl_add_u32 v21, v22, 3, v21")
    a(f"s_lshl_b32 {t2}, {w}, 8\nv_add_u32 {vRED}, {t2}, v21")
    a(f"s_mov_b32 {sLO}, 0x00003f80\ns_mov_b32 {sHI}, 0x3f800000\ns_mov_b32 {sNC}, {hex(f2u(-(128 ** -0.5) * math.log2(math.e)))}")
    srd(a, 8, P_MEM0, 16384)
    a(f"v_bfe_u32 v21, v20, 2, 3\nv_lshlrev_b32 v21, 11, v21\nv_and_b32 v22, 3, v20\nv_lshl_add_u32 v21, v22, 2, v21")
    a(f"s_lshl_b32 {t2}, {i}, 6\ns_lshl_b32 {t3}, {w}, 4\ns_add_u32 {t2}, {t2}, {t3}\ns_cmp_eq_u32 {gx}, 0\ns_cselect_b32 {t2}, {t2}, 0x100000")
    a(f"buffer_load_dword {vM0}, v21, s[8:11], {t2} offen")
    def phys(dst, src):
        a(f"s_lshr_b32 {t3}, {src}, 13\ns_lshl_b32 {t3}, {t3}, 14\ns_and_b32 {dst}, {src}, 8191\ns_add_u32 {dst}, {dst}, {t3}")
    a(f"s_lshl_b32 {t0}, {j}, 14\ns_lshl_b32 {t1}, {w}, 12\ns_add_u32 {t0}, {t0}, {t1}      ; (16j+4w)K")
    a(f"s_lshl_b32 {t1}, {gx}, 15\ns_add_u32 {bX1Lc}, {t0}, {t1}\ns_add_u32 {bX1Lc}, {bX1Lc}, {X1L}")
    a(f"s_xor_b32 {t2}, {t1}, 0x8000\ns_add_u32 {t2}, {t2}, {t0}")
    phys(bX1Rc, t2); a(f"s_add_u32 {bX1Rc}, {bX1Rc}, {X1R + (sel or 0) * 8192}")
    a(f"s_lshl_b32 {t0}, {i}, 10\ns_add_u32 {t2}, {t0}, {t1}\ns_add_u32 {bX1Lp}, {t2}, {X1L}")
    phys(bX1Rp, t2); a(f"s_add_u32 {bX1Rp}, {bX1Rp}, {X1R + (sel or 0) * 8192}")
    a(f"s_lshl_b32 {t0}, {h}, 1\ns_add_u32 {t0}, {t0}, {j}\ns_lshl_b32 {t0}, {t0}, 13\ns_add_u32 {bX2r}, {t0}, {X2}")
    a(f"s_lshl_b32 {t1}, {w}, 9\ns_add_u32 {t1}, {t1}, 4096\ns_add_u32 {bX2rv}, {bX2r}, {t1}")
    a(f"s_xor_b32 {t0}, {bX2r}, 0x2000\ns_add_u32 {bX2sv}, {t0}, {t1}\ns_lshl_b32 {t1}, {w}, 10\ns_add_u32 {bX2s}, {t0}, {t1}\ns_add_u32 {bX2r}, {bX2r}, {t1}")
    a(f"s_lshl_b32 {t0}, {h}, 12\ns_add_u32 {t0}, {t0}, {t1}\ns_lshl_b32 {t1}, {j}, 9\ns_add_u32 {t0}, {t0}, {t1}\ns_add_u32 {bX3p}, {t0}, {X3}")
    a(f"s_lshl_b32 {t0}, {gx}, 16\ns_lshl_b32 {t1}, {w}, 14\ns_add_u32 {t0}, {t0}, {t1}\ns_add_u32 {bX3c}, {t0}, {X3}")
    a(f"s_lshl_b32 {t0}, {j}, 11\ns_add_u32 {bKV}, {t0}, {h}         ; j*2048+h")
    a(f"s_lshl_b32 {t0}, {j}, 5\ns_add_u32 {t0}, {t0}, {h}\ns_mul_i32 {bFKV}, {t0}, {FS}\ns_add_u32 {qX1Rq}, {bFKV}, {F_R}\ns_add_u32 {bFKV}, {bFKV}, {F_KV}\ns_cmp_eq_u32 {w}, 0\ns_cselect_b32 {qX1Rq}, {qX1Rq}, {OOB}")
    a(f"s_lshl_b32 {t0}, {j}, 9\ns_lshr_b32 {t1}, {h}, 1\ns_add_u32 {t0}, {t0}, {t1}\ns_lshl_b32 {t0}, {t0}, 2\ns_and_b32 {t1}, {h}, 1\ns_add_u32 {t0}, {t0}, {t1}\ns_lshl_b32 {t0}, {t0}, 12\ns_lshl_b32 {t1}, {w}, 9\ns_add_u32 {t0}, {t0}, {t1}\ns_add_u32 {bFR}, {t0}, {KVM + (sel or 0) * 8192}")
    a("v_mov_b32 v24, -1\nv_mov_b32 v25, -1\nv_mov_b32 v26, -1\nv_mov_b32 v27, -1\nv_mov_b32 v28, 0\nv_mov_b32 v29, 0")
    for sl in range(4):
        a(f"s_add_u32 {t0}, {bX1Lp}, {sl << 16}\nbuffer_store_dword v24, {vX1P}, {WS}, {t0} offen")
        a(f"s_add_u32 {t0}, {bX1Rp}, {sl << 17}\nbuffer_store_dword v24, {vX1P}, {WS}, {t0} offen sc1")
        a(f"s_xor_b32 {t0}, {t0}, 8192\nbuffer_store_dword v24, {vX1P}, {WS}, {t0} offen sc1")
        a(f"s_add_u32 {t0}, {bX2s}, {sl << 19}\nbuffer_store_dwordx4 v[24:27], {vL16}, {WS}, {t0} offen")
        a(f"s_add_u32 {t0}, {bX2sv}, {sl << 19}\nbuffer_store_dwordx4 v[24:27], {vVS}, {WS}, {t0} offen")
        a(f"s_add_u32 {t0}, {bX3p}, {sl << 17}\nbuffer_store_dwordx4 v[24:27], {vOP}, {WS}, {t0} offen")
    a("v_mov_b32 v30, v20")
    arrive(a)
    srd(a, 8, P_WQ, 8 * MB); srd(a, 32, P_WK, 8 * MB); srd(a, 36, P_WV, 8 * MB); srd(a, 40, P_WO, 8 * MB)
    S = ["s[8:11]", "s[32:35]", "s[36:39]", "s[40:43]"]
    vDA, vDO, vTA, vTV, vTO = "v31", "v32", "v33", "v34", "v35"
    a(f"v_lshrrev_b32 v21, 2, v30\nv_and_b32 v22, 3, v30\nv_lshlrev_b32 v23, 4, v22\nv_lshl_add_u32 {vDA}, v21, 13, v23\nv_lshl_add_u32 {vDO}, v21, 11, v23")
    a(f"s_lshl_b32 s44, {w}, 15\ns_add_u32 s44, s44, 0x8000")
    a(f"v_lshrrev_b32 v24, 4, v30\nv_bfe_u32 v25, v30, 2, 2\nv_lshlrev_b32 v25, 6, v25\nv_add_u32 v25, s44, v25")
    a(f"v_lshl_add_u32 v26, v24, 9, v25\nv_add_u32 {vTA}, v26, v23\nv_lshl_add_u32 {vTV}, v22, 3, v26")
    a(f"v_lshl_add_u32 v26, v24, 8, v25\nv_add_u32 {vTO}, v26, v23")
    a(f"s_lshl_b32 s45, {j}, 22\ns_lshl_b32 {t0}, {h}, 8\ns_add_u32 s45, s45, {t0}\ns_lshl_b32 {t0}, {w}, 6\ns_add_u32 s45, s45, {t0}")
    a(f"s_lshl_b32 s46, {gx}, 22\ns_lshl_b32 {t0}, {w}, 20\ns_add_u32 s46, s46, {t0}\ns_lshl_b32 {t0}, {i}, 6\ns_add_u32 s46, s46, {t0}")
    a(f"s_lshl_b32 s47, {w}, 2")
    def dma(B):
        m, p = divmod(B, 16)
        if m < 3:
            a(f"s_add_u32 {t0}, s47, {p}\ns_and_b32 {t0}, {t0}, 15\ns_lshl_b32 {t0}, {t0}, 18\ns_add_u32 {t0}, {t0}, s45\ns_add_u32 {t1}, {t0}, {16 * 8192}")
        else:
            a(f"s_add_u32 {t0}, s46, {p * 32 * 2048}\ns_add_u32 {t1}, {t0}, {16 * 2048}")
        v = vDA if m < 3 else vDO
        a(f"s_add_u32 m0, s44, {p * 2048}\nbuffer_load_dwordx4 {v}, {S[m]}, {t0} offen{opt.get('pol_R', '')} lds")
        a(f"s_add_u32 m0, s44, {p * 2048 + 1024}\nbuffer_load_dwordx4 {v}, {S[m]}, {t1} offen{opt.get('pol_R', '')} lds")
    def W(m, p, t):
        r = ((m * 16 + p) * 2 + t) * 4
        return ("a", r) if r < 256 else ("v", r - 128)
    for B in range(16): dma(B)
    for B in range(64):
        m, p = divmod(B, 16)
        a(f"s_waitcnt vmcnt({min(30, 2 * (63 - B))})")
        for t in range(2):
            for u in range(2):
                if m < 3:
                    f, r = W(m, p, t)
                    a(f"ds_read_b64_tr_b16 {vr(r + 2 * u, 2, f)}, {vTA if m < 2 else vTV} offset:{p * 2048 + u * 256 + t * (8 if m < 2 else 32)}")
                else:
                    a(f"ds_read_b64_tr_b16 {vr(40 + 4 * t + 2 * u, 2)}, {vTO} offset:{p * 2048 + u * 1024 + t * 8}")
        a("s_waitcnt lgkmcnt(0)")
        if m < 3: dma(B + 16)
        else: a(f"ds_write_b128 {vWO}, v[40:43] offset:{p * 2048}\nds_write_b128 {vWO}, v[44:47] offset:{p * 2048 + 1024}\ns_waitcnt lgkmcnt(0)")
    Wr = lambda m, p, t: vr(W(m, p, t)[1], 4, W(m, p, t)[0])
    wait_start(a, 1)
    if sel is None: a(f"v_readfirstlane_b32 {t0}, v20\ns_lshr_b32 {t0}, {t0}, 16\ns_and_b32 {t0}, {t0}, 1\ns_lshl_b32 {t0}, {t0}, 13\ns_add_u32 {bX1Rc}, {bX1Rc}, {t0}\ns_add_u32 {bX1Rp}, {bX1Rp}, {t0}\ns_add_u32 {bFR}, {bFR}, {t0}")
    if diag: a("s_memrealtime s[98:99]\ns_waitcnt lgkmcnt(0)\ns_mov_b32 s100, 0\ns_mov_b32 s101, 0")
    if stamps:
        for k in range(16): a(f"s_mov_b32 s{64+k}, 0")
        a("s_memtime s[80:81]\ns_waitcnt lgkmcnt(0)\ns_mov_b32 s82, s80")
    ldF = f"s_buffer_load_dwordx2 s[86:87], {WS}, {bFKV} glc"
    rdSEL = f"ds_read_b64 {vr(VXR + 2, 2)}, {vROT[0]} offset:5120"
    SIG = f"s_mov_b32 {qKVM}, 1\ns_buffer_atomic_add {qKVM}, {WS}, {pFLG}"
    a(f"v_min_u32 {vM0}, -2, {vM0}\ns_mov_b32 {n}, 0\ns_mov_b32 {qKVM}, {OOB}")
    a(f"s_mov_b32 s8, {hex(f2u(128 ** -0.5 * math.log2(math.e)))}\ns_mov_b32 s9, s8\ns_cmp_eq_u32 {j}, 0\ns_cselect_b32 s10, 0x00ff00ff, 0\ns_cselect_b32 s11, 0, 0xff00ff00\ns_or_b32 s10, s10, s11\ns_mov_b32 s11, s10")
    a(f"v_mov_b32 v40, 0\nv_mov_b32 v41, 0")
    for g in range(4):
        for e in range(4): a(f"v_writelane_b32 v{40 + e // 2}, {sHI if e % 2 else sLO}, {20*g + e}")
    a(f"ds_write_b64 {vROT[0]}, v[40:41] offset:5120\ns_lshl_b32 {t0}, {w}, 13\ns_add_u32 m0, {t0}, 6144\n{rdSEL}\ns_waitcnt lgkmcnt(0)")
    a(f"buffer_store_dword {vM0}, {vX1P}, {WS}, {bX1Lp} offen\nbuffer_store_dword {vM0}, {vX1P}, {WS}, {bX1Rp} offen sc1")
    def chk(regs, first):
        k = 0
        if first: a(f"v_max3_u32 {vCHK}, v{regs[0]}, v{regs[1]}, v{regs[2]}\nv_max_u32 {vCHK}, {vCHK}, v{regs[3]}"); k = 4
        while k < len(regs): a(f"v_max3_u32 {vCHK}, {vCHK}, v{regs[k]}, v{regs[k+1]}"); k += 2
    rng = lambda b, c: list(range(b, b + c))
    retries = []
    def cnt(bit):
        return f"s_add_u32 s{100 + bit // 2}, s{100 + bit // 2}, {1 << (16 * (bit % 2))}\n" if diag == 1 else ""
    def branch_retry(loads, back, code, bit):
        l = a.uniq("L_rt")
        a(f"v_cmp_eq_u32 vcc, -1, {vCHK}\ns_cbranch_vccnz {l}")
        retries.append((l, cnt(bit) + loads, back, code))
    a.label("L_R_step")
    bk0 = f"s_and_b32 {t0}, {n}, 3\ns_lshl_b32 {t1}, {t0}, 16\ns_add_u32 {dX1Lc}, {bX1Lc}, {t1}\ns_xor_b32 {t1}, {t1}, 0x20000\ns_add_u32 {rX1L}, {bX1Lp}, {t1}\ns_mov_b32 s3, 0"
    bk0 += f"\ns_lshl_b32 {t1}, {t0}, 17\ns_add_u32 {dX1Rc}, {bX1Rc}, {t1}\ns_add_u32 {dX3p}, {bX3p}, {t1}\ns_add_u32 {dX3c}, {bX3c}, {t1}"
    bk0 += f"\ns_xor_b32 {t1}, {t1}, 0x40000\ns_add_u32 {rX1R}, {bX1Rp}, {t1}\ns_add_u32 {rX3p}, {bX3p}, {t1}"
    bk1 = f"s_lshl_b32 {t1}, {t0}, 19\ns_add_u32 {dX2s}, {bX2s}, {t1}\ns_add_u32 {dX2sv}, {bX2sv}, {t1}\ns_add_u32 {dX2r}, {bX2r}, {t1}\ns_add_u32 {dX2rv}, {bX2rv}, {t1}"
    bk1 += f"\ns_xor_b32 {t1}, {t1}, 0x100000\ns_add_u32 {rX2s}, {bX2s}, {t1}\ns_add_u32 {rX2sv}, {bX2sv}, {t1}"
    bk1 += f"\ns_add_u32 {t0}, {n}, 1\ns_and_b32 {t0}, {t0}, 3\ns_lshl_b32 {t1}, {t0}, 16\ns_add_u32 {dX1Lp}, {bX1Lp}, {t1}\ns_lshl_b32 {t1}, {t0}, 17\ns_add_u32 {dX1Rp}, {bX1Rp}, {t1}"
    bk1 += f"\ns_cmp_eq_u32 {n}, {D-1}\ns_cselect_b32 s59, -1, 0\ns_mov_b32 s58, 0"
    bk2 = f"s_mul_i32 {t0}, {j}, {D}\ns_sub_u32 {t0}, {n}, {t0}\ns_add_u32 {pVAL}, {t0}, 1\ns_lshl_b32 {t1}, {t0}, 5\ns_add_u32 {t1}, {t1}, {bKV}"
    bk2 += f"\ns_lshl_b32 {t2}, {t1}, 13\ns_add_u32 {t2}, {t2}, {sROT[0]}\ns_add_u32 {dKX}, {t2}, {KX}\ns_add_u32 {dVX}, {t2}, {VX}"
    bk2 += f"\ns_and_b32 {t2}, {t0}, 31\ns_lshl_b32 {t2}, {t2}, 18\ns_add_u32 {dKVM}, {t2}, {bFR}\ns_and_b32 {t2}, {t0}, 8\ns_lshl_b32 {t2}, {t2}, 10\ns_xor_b32 {dKVM}, {dKVM}, {t2}"
    bk2 += f"\ns_cmp_lt_u32 {t0}, 64\ns_cselect_b32 {dKX}, {dKX}, {OOB}\ns_cselect_b32 {dVX}, {dVX}, {OOB}\ns_cselect_b32 {dKVM}, {dKVM}, {OOB}\ns_cselect_b32 {pFLG}, {qX1Rq}, {OOB}\ns_cselect_b32 {dTHR}, {pVAL}, 0"
    if opt.get('fixkx'): bk2 += f"\ns_lshl_b32 {t2}, {bKV}, 13\ns_add_u32 {t2}, {t2}, {sROT[0]}\ns_add_u32 {dKX}, {t2}, {KX}\ns_add_u32 {dVX}, {t2}, {VX}"
    a(bk0)
    ldL = "\n".join(f"buffer_load_dwordx4 {vr(OWN + 4*p, 4)}, {vL16}, {WS}, {dX1Lc} offen offset:{p*1024} sc1" for p in range(4))
    ldR = "\n".join(f"buffer_load_dwordx4 {vr(RING + 4*p, 4)}, {vL16}, {WS}, {dX1Rc} offen offset:{p*1024} sc1" for p in range(4))
    def cvt(T, A, k): return f"v_cvt_pk_bf16_f32 v{T + k}, v{A + 2*k}, v{A + 2*k + 1}"
    def chkl(regs, first):
        out = []; k = 0
        if first: out += [f"v_max3_u32 {vCHK}, v{regs[0]}, v{regs[1]}, v{regs[2]}", f"v_max_u32 {vCHK}, {vCHK}, v{regs[3]}"]; k = 4
        while k < len(regs): out.append(f"v_max3_u32 {vCHK}, {vCHK}, v{regs[k]}, v{regs[k+1]}"); k += 2
        return out
    CMP = f"v_cmp_eq_u32 vcc, -1, {vCHK}"
    def br(loads, back, code, bit):
        l = a.uniq("L_rt"); a(f"s_cbranch_vccnz {l}"); retries.append((l, cnt(bit) + loads, back, code))
    SEL = [vr(VXR + 2, 4), vr(VXR, 4)]
    ACC = KXR
    a(ldF)
    a(f"v_mov_b32 v{VXR}, 0\nv_mov_b32 v{VXR+1}, 0\nv_mov_b32 v{VXR+4}, 0\nv_mov_b32 v{VXR+5}, 0")
    a(f"s_waitcnt vmcnt({opt.get('wL', 1)})")
    for _ in range(opt.get('dL', 0)): a("s_nop 15")
    stamp(0)
    a(ldL); a(bk1)
    early = opt.get('earlyR', 0)
    if early:
        a("s_waitcnt vmcnt(4)")
        for _ in range(opt.get('dR', 0)): a("s_nop 15")
        a(ldR)
    a.label("L_R_x1l")
    for p in range(4):
        a(f"s_waitcnt vmcnt({3 - p + (4 if early else 0)})")
        c = chkl(rng(OWN + 4*p, 4), p == 0)
        if p == 3: a(c[0]); a(c[1]); a(CMP); c = ["", ""]
        for u in range(2):
            a(f"v_mfma_f32_16x16x32_bf16 {vr(ACC + 8*p + 4*u, 4)}, {SEL[u]}, {vr(OWN + 4*p, 4)}, 0")
            if c[u]: a(c[u])
    br(ldL, "L_R_x1l", 2, 0)
    stamp(1)
    if not early:
        for _ in range(opt.get('dR', 0)): a("s_nop 15")
        a(ldR)
    a(bk2)
    a.label("L_R_kvf")
    l = a.uniq("L_rt"); retries.append((l, cnt(0) + ldF, "L_R_kvf", 3))
    a(f"s_waitcnt lgkmcnt(0)\ns_min_u32 s86, s86, s87\ns_cmp_lt_u32 s86, {dTHR}\ns_cbranch_scc1 {l}")
    stamp(2)
    a.label("L_R_x1r")
    TT = [AQ, AK, AV, TMP]
    wrs = lambda p: [cvt(OWN + 4*p, TT[p], k) for k in range(4)] + [f"ds_write_b128 {vROT[0]}, {vr(OWN + 4*p, 4)} offset:{p*1024}"]
    for p in range(4):
        a(f"s_waitcnt vmcnt({3 - p})")
        for u in range(2):
            a(f"v_mfma_f32_16x16x32_bf16 {vr(TT[p] + 4*u, 4)}, {SEL[u]}, {vr(RING + 4*p, 4)}, {vr(ACC + 8*p + 4*u, 4)}")
        for x in chkl(rng(RING + 4*p, 4), p == 0): a(x)
        if p == 3: a(CMP)
        if p > 0:
            for x in wrs(p - 1): a(x)
    br(ldR, "L_R_x1r", 4, 1)
    for x in wrs(3): a(x)
    stamp(3)
    fr = lambda p: vr(OWN + 4*p, 4) if p < 4 else vr(RING + 4*(p % 4), 4)
    rd = lambda p: f"ds_read_b128 {vr(RING + 4*(p % 4), 4)}, {vROT[p // 4]} offset:{(p % 4)*1024}"
    def mm(m, p, t, first):
        acc = vr((AQ, AK, AV)[m] + 4*t, 4)
        A, Bo = (Wr(m, p, t), fr(p)) if m < 2 else (fr(p), Wr(m, p, t))
        a(f"v_mfma_f32_16x16x32_bf16 {acc}, {A}, {Bo}, {'0' if first else acc}")
    KMR = KXR + 4
    kvl = [f"buffer_load_dwordx4 {vL16}, {WS}, {dKX} offen sc1 lds", f"buffer_load_dwordx4 {vL16}, {WS}, {dKX} offen offset:1024 sc1 lds"]
    kvl += [f"buffer_load_dwordx4 {vr(VXR + 4*k, 4)}, {vL16}, {WS}, {dVX} offen offset:{k*1024} sc1" for k in range(2)]
    kvl += [f"buffer_store_dword v{KXR+2}, {vX1P}, {WS}, {rX1R} offen sc1", f"buffer_store_dword v{KXR+2}, {vX1P}, {WS}, {rX1L} offen"]
    stF = f"buffer_store_dword v{KXR}, v{KXR+1}, {WS}, {qFLG} offen sc1"
    kxr = [f"ds_read_b128 {vr(KXR + 4*k, 4)}, {vROT[k // 2]} offset:{6144 + (k % 2)*1024}" for k in range(8)]
    mm(0, 0, 0, True); mm(0, 0, 1, True); mm(1, 0, 0, True); mm(1, 0, 1, True)
    a("s_waitcnt lgkmcnt(0)\ns_barrier")
    stamp(4)
    trace(a, diag, n, 0, (KXR + 8, KXR + 9))
    def mt(m, p, t, first=False):
        acc = vr((AQ, AK, AV)[m] + 4*t, 4)
        A, Bo = (Wr(m, p, t), fr(p)) if m < 2 else (fr(p), Wr(m, p, t))
        return f"v_mfma_f32_16x16x32_bf16 {acc}, {A}, {Bo}, {'0' if first else acc}"
    E = frozenset()
    st = Stream(a)
    M = []
    for p in range(1, 14):
        for k, (m, t) in enumerate(((0, 0), (0, 1), (1, 0), (1, 1))):
            M.append((mt(m, p, t), [rd(4 + k)] if p == 1 else ([rd(p + 4)] if (k == 3 and 4 <= p < 12) else []), E))
    M += [(mt(m, p, t), [], E) for m in range(2) for p in (14, 15) for t in range(2)]
    kpos = opt.get('kpos', 'b2'); kst = opt.get('kst', 4)
    q = [f"v_mov_b32 v{KXR+2}, -1"]
    for k, x in enumerate(kvl): q += [('at', 5 + k * kst), x]
    bar = ["s_waitcnt vmcnt(4)\ns_barrier"]
    if kpos == 12: q += [('at', 44)] + bar + kxr
    qs = [Q(q)]; weave(st, M, qs); flush(st, qs)
    mm(2, 12, 0, True)
    for k in range(4): a(cvt(TMP, AQ, k))
    a(f"buffer_store_dwordx4 {vr(TMP, 4)}, {vQS}, {WS}, {dX2s} offen")
    mm(2, 12, 1, True)
    for k in range(4): a(cvt(TMP + 4, AK, k))
    a(f"buffer_store_dwordx4 {vr(TMP + 4, 4)}, {vKS}, {WS}, {dX2s} offen")
    stamp(5)
    fill = [f"v_mov_b32_dpp v{AQ + k}, v{AQ + k} row_ror:8 row_mask:0xf bank_mask:0xf" for k in range(8)]
    fill += [f"v_cndmask_b32 v{AK + k}, v{AQ + k}, v{AK + k}, {mOWN16}" for k in range(8)]
    fill += [f"v_cndmask_b32 v{SM + k}, {vNINF}, 0, {mOWN32}" for k in range(4)]
    RQ = AQ
    ldQ = f"buffer_load_dwordx4 {vr(RQ, 4)}, {vL16}, {WS}, {dX2r} offen sc1"
    st.ds = []
    st.emit(rd(4))
    M = []
    for p in [13, 14, 15, 0, 1, 2, 3, 4, 5, 6, 7, 8, 9, 10, 11]:
        M += [(mt(2, p, 0), [], E), (mt(2, p, 1), [rd(p - 8)] if p >= 13 else ([rd(p + 4)] if 4 <= p < 8 else []), E)]
    qs = [Q(fill[:16] + [('at', opt.get('qpos', 16)), ldQ] + fill[16:])]
    weave(st, M, qs); flush(st, qs)
    stamp(6)
    a("s_waitcnt vmcnt(0)")
    if kpos == 'b2': a(kxr[0]); a(kxr[1])
    a.label("L_R_x2")
    chk(rng(RQ, 4), True)
    a(CMP)
    FT = RING
    for k in range(4):
        a(f"v_dot2_f32_bf16 v{FT + 2*k}, v{RQ + k}, {sLO}, v{AK + 2*k}\nv_dot2_f32_bf16 v{FT + 2*k + 1}, v{RQ + k}, {sHI}, v{AK + 2*k + 1}")
    br(ldQ, "L_R_x2", 5, 2)
    for k in range(4): a(cvt(OWN, FT, k))
    a(f"ds_write_b128 {vROT[0]}, {vr(OWN, 4)} offset:4096")
    SX = [TMP, TMP + 4]
    def smm(p, fl=()):
        F = vr(OWN + 4*p, 4); fl = list(fl)
        for tt in range(3):
            if tt < 2: a(f"v_mfma_f32_16x16x32_bf16 {vr(SX[tt], 4)}, {vr(KXR + 8*p + 4*tt, 4)}, {F}, {'0' if p == 0 else vr(SX[tt], 4)}")
            else: a(f"v_mfma_f32_16x16x32_bf16 {vr(SM, 4)}, {F}, {F}, {vr(SM, 4)}")
            for _ in range(2):
                if fl: a(fl.pop(0))
        for x in fl: a(x)
    VS = RING + 8
    for k in range(4): a(cvt(VS, AV, k))
    a(f"buffer_store_dwordx4 {vr(VS, 4)}, {vVS}, {WS}, {dX2sv} offen")
    a("s_waitcnt lgkmcnt(0)\ns_barrier")
    stamp(7)
    rdF = lambda p: f"ds_read_b128 {vr(OWN + 4*p, 4)}, {vROT[p]} offset:4096"
    ONES, PX, PM, OO, LL, MX = KEEP, KEEP + 4, KEEP + 12, KEEP + 16, KEEP + 24, KEEP + 28
    VA = KXR
    zz = [f"v_cndmask_b32 v{AV + k}, 0, v{AV + k}, {mOWN32}" for k in range(8)] + [f"v_mov_b32 v{ONES + k}, 0x3f803f80" for k in range(4)]
    zz += [f"v_cvt_pk_bf16_f32 v{VA + 4*(k // 2) + k % 2}, v{AV + 2*k}, v{AV + 2*k + 1}" for k in range(4)]
    ldV = f"buffer_load_dwordx2 {vr(VA + 2, 2)}, {vVMP}, {WS}, {dX2rv} offen sc1\nbuffer_load_dwordx2 {vr(VA + 6, 2)}, {vVMP}, {WS}, {dX2rv} offen offset:8 sc1"
    st = Stream(a)
    rs = []
    for p in range(1, 4): rs += [rdF(p)] + ([kxr[2*p], kxr[2*p + 1]] if kpos == 'b2' else [])
    for x in rs[:opt.get('pre', 4)]: st.emit(x)
    rs = rs[opt.get('pre', 4):]
    M = []
    for p in range(4):
        F = vr(OWN + 4*p, 4)
        ms = [f"v_mfma_f32_16x16x32_bf16 {vr(SM, 4)}, {F}, {F}, {vr(SM, 4)}"]
        ms += [f"v_mfma_f32_16x16x32_bf16 {vr(SX[tt], 4)}, {vr(KXR + 8*p + 4*tt, 4)}, {F}, {'0' if p == 0 else vr(SX[tt], 4)}" for tt in range(2)]
        M += [(x, [rs.pop(0)] if rs else [], E) for x in ms]
    qs = [Q(zz[:12] + [('at', 4)] + zz[12:])]; weave(st, M, qs); flush(st, qs)
    a(ldV)
    sG = [dX3c, t0, t1, t2]
    a(f"s_add_u32 {t0}, {dX3c}, 4096\ns_add_u32 {t1}, {dX3c}, 8192\ns_add_u32 {t2}, {dX3c}, 12288")
    s = rng(SX[0], 8) + rng(SM, 4)
    a(f"v_max3_f32 v{MX}, v{s[0]}, v{s[1]}, v{s[2]}\nv_max3_f32 v{MX+1}, v{s[3]}, v{s[4]}, v{s[5]}\nv_max3_f32 v{MX}, v{MX}, v{s[6]}, v{s[7]}")
    a(f"v_max3_f32 v{MX+1}, v{MX+1}, v{s[8]}, v{s[9]}\nv_max3_f32 v{MX+2}, v{MX}, v{s[10]}, v{s[11]}\nv_max_f32 v{MX}, v{MX+2}, v{MX+1}\nv_max_f32 v{MX+1}, v{MX+2}, v{MX+1}")
    a(f"v_permlane16_swap_b32 v{MX}, v{MX+1}\nv_max_f32 v{MX+2}, v{MX}, v{MX+1}\nv_max_f32 v{MX+3}, v{MX}, v{MX+1}")
    a(f"v_permlane32_swap_b32 v{MX+2}, v{MX+3}\nv_max_f32 v{MX}, v{MX+2}, v{MX+3}\nv_mul_f32 v{MX}, {sNC}, v{MX}")
    for k in range(6): a(f"v_pk_fma_f32 {vr(s[2*k], 2)}, {vr(s[2*k], 2)}, {sCC}, {vr(MX, 2)} op_sel_hi:[1,1,0]")
    for r in s[:8]: a(f"v_exp_f32 v{r}, v{r}")
    for k in range(4): a(f"v_cvt_pk_bf16_f32 v{PX + k}, v{s[2*k]}, v{s[2*k+1]}")
    for r in s[8:10]: a(f"v_exp_f32 v{r}, v{r}")
    a(f"v_mfma_f32_16x16x32_bf16 {vr(LL, 4)}, {vr(ONES, 4)}, {vr(PX, 4)}, 0")
    a(f"v_exp_f32 v{s[10]}, v{s[10]}")
    a(f"v_mfma_f32_16x16x32_bf16 {vr(OO, 4)}, {vr(VXR, 4)}, {vr(PX, 4)}, 0")
    a(f"v_exp_f32 v{s[11]}, v{s[11]}")
    a(f"v_mfma_f32_16x16x32_bf16 {vr(OO + 4, 4)}, {vr(VXR + 4, 4)}, {vr(PX, 4)}, 0")
    stamp(8)
    a("s_waitcnt vmcnt(0)")
    a.label("L_R_x2v")
    chk([VA + 2, VA + 3, VA + 6, VA + 7], True)
    a(CMP)
    for k in range(4): a(f"v_cvt_pk_bf16_f32 v{PM + k}, v{s[8 + 2*(k % 2)]}, v{s[9 + 2*(k % 2)]}")
    br(ldV, "L_R_x2v", 6, 2)
    a(f"v_mfma_f32_16x16x16_bf16 {vr(LL, 4)}, {vr(ONES, 2)}, {vr(PM, 2)}, {vr(LL, 4)}")
    for t in range(2): a(f"v_mfma_f32_16x16x32_bf16 {vr(OO + 4*t, 4)}, {vr(VA + 4*t, 4)}, {vr(PM, 4)}, {vr(OO + 4*t, 4)}")
    for k in range(4): a(f"v_mov_b32 v{TMP + k}, -1")
    a(f"v_rcp_f32 v{MX}, v{LL}")
    for k in range(4): a(f"v_pk_mul_f32 {vr(OO + 2*k, 2)}, {vr(OO + 2*k, 2)}, {vr(MX, 2)} op_sel_hi:[1,0]")
    for k in range(4): a(cvt(PX, OO, k))
    a(f"buffer_store_dwordx4 {vr(PX, 4)}, {vOP}, {WS}, {dX3p} offen")
    stamp(9)
    a(f"buffer_store_dwordx4 {vr(OWN, 4)}, {vKMP}, {WS}, {dKVM} offen sc1")
    for k in range(4):
        r = VA + 4*(k // 2) + 2 + k % 2
        a(f"v_dot2c_f32_bf16 v{AV + 2*k}, {sLO}, v{r}\nv_dot2c_f32_bf16 v{AV + 2*k + 1}, {sHI}, v{r}")
    for k in range(4): a(cvt(SM, AV, k))
    a(f"buffer_store_dwordx4 {vr(SM, 4)}, {vVMP}, {WS}, {dKVM} offen offset:2048 sc1")
    a(f"buffer_store_dwordx4 {vr(TMP, 4)}, {vL16}, {WS}, {rX2s} offen\nbuffer_store_dwordx4 {vr(TMP, 4)}, {vVS}, {WS}, {rX2sv} offen\nbuffer_store_dwordx4 {vr(TMP, 4)}, {vOP}, {WS}, {rX3p} offen")
    a(f"s_barrier\ns_cmp_eq_u32 {n}, {63 + D}\ns_cbranch_scc1 L_R_done")
    WR = [OWN, OWN + 4, OWN + 8, OWN + 12, VXR, VXR + 4, AV, AV + 4]
    wrd = lambda f: f"ds_read_b128 {vr(WR[f % 8], 4)}, {vWO} offset:{f*1024}"
    OF = lambda k: (KXR + 4*(k % 12)) if k % 12 < 8 else (RING + 4*(k % 12 - 8))
    for f in range(8): a(wrd(f))
    ld1 = lambda k: f"buffer_load_dwordx4 {vr(OF(k), 4)}, {vX3C}, {WS}, {sG[k // 4]} offen offset:{(k % 4)*1024} sc1"
    a(f"s_waitcnt vmcnt({opt.get('w3', 3)})")
    for _ in range(opt.get('d3', 0)): a("s_nop 15")
    stamp(10)
    AHEAD = opt.get('ahead', 6)
    issued = AHEAD
    for k in range(AHEAD): a(ld1(k))
    AC = [AQ, AK]
    def m3(k, t):
        G = k // 4; f = 2*k + t
        D_ = vr(AC[G % 2] + 4*t, 4)
        C_ = '0' if k == 0 else (vr(AC[(G - 1) % 2] + 4*t, 4) if k % 4 == 0 else D_)
        return f"v_mfma_f32_16x16x32_bf16 {D_}, {vr(WR[f % 8], 4)}, {vr(OF(k), 4)}, {C_}"
    slow = []
    for k in range(16):
        G = k // 4
        a(f"s_waitcnt vmcnt({issued - k - 1}) lgkmcnt({min(6, 30 - 2*k)})")
        c = chkl(rng(OF(k), 4), k % 4 == 0)
        if k % 4 == 3: a(c[0]); a(c[1]); a(CMP); c = ["", ""]
        for t in range(2):
            a(m3(k, t))
            if c[t]: a(c[t])
            if 2*k + t + 8 < 32: a(wrd(2*k + t + 8))
        if issued < 16: a(ld1(issued)); issued += 1
        if k % 4 == 3:
            a(f"s_cbranch_vccnz L_R_x3s{G}"); a.label(f"L_R_x3b{G}")
            slow.append((G, issued))
            if G == 0: stamp(11)
    stamp(12)
    FA = AC[1]
    a(f"s_add_u32 {n}, {n}, 1\n{rdSEL}")
    a(f"ds_write_b128 {vROT[0]}, {vr(FA, 4)} offset:6144\nds_write_b128 {vROT[0]}, {vr(FA + 4, 4)} offset:7168")
    a(f"s_waitcnt lgkmcnt(0)\ns_barrier")
    stamp(13)
    for q in range(4): a(f"ds_read_b64 {vr(AQ + 2*q, 2)}, {vRED} offset:{q*8192 + 6144}")
    a(f"s_waitcnt lgkmcnt(2)\nv_pk_add_f32 {vr(AQ, 2)}, {vr(AQ, 2)}, {vr(AQ + 2, 2)}")
    a(f"s_waitcnt lgkmcnt(0)\nv_pk_add_f32 {vr(AQ + 4, 2)}, {vr(AQ + 4, 2)}, {vr(AQ + 6, 2)}")
    a(f"v_pk_add_f32 {vr(AQ, 2)}, {vr(AQ, 2)}, {vr(AQ + 4, 2)}\nv_cvt_pk_bf16_f32 v{AQ}, v{AQ}, v{AQ+1}")
    a(f"v_cndmask_b32 v{AQ}, v{AQ}, {vM0}, {mINJ}")
    a(f"buffer_store_dword v{AQ}, {vX1P}, {WS}, {dX1Lp} offen\nbuffer_store_dword v{AQ}, {vX1P}, {WS}, {dX1Rp} offen sc1")
    a(SIG)
    stamp(14)
    a("s_branch L_R_step")
    for G, iss in slow:
        a.label(f"L_R_x3s{G}")
        a("s_nop 7")
        for f in range(8*G, 8*G + 8): a(wrd(f))
        a.label(f"L_R_x3r{G}")
        if diag == 1: a(cnt(3).strip())
        for k in range(4*G, iss): a(ld1(k))
        a(f"s_add_u32 s3, s3, 1\ns_cmp_lt_u32 s3, {SPIN}\ns_cbranch_scc0 L_R_x3abort\ns_waitcnt vmcnt({iss - 4*G - 4})")
        chk([OF(k) + e for k in range(4*G, 4*G + 4) for e in range(4)], True)
        a(f"{CMP}\ns_cbranch_vccnz L_R_x3r{G}\ns_waitcnt lgkmcnt(0)")
        for k in range(4*G, 4*G + 4):
            for t in range(2):
                a(m3(k, t))
                if 2*k + t + 8 < 32: a(wrd(2*k + t + 8))
        a(f"s_branch L_R_x3b{G}")
    a.label("L_R_x3abort")
    a("s_mov_b32 s3, 7\ns_branch L_abort")
    for l, loads, back, code in retries:
        a.label(l)
        a(loads)
        if code != 3: a("s_waitcnt vmcnt(0)")
        spin_tail(a, back, code)
    a.label("L_R_done")
    a(f"s_waitcnt vmcnt(0)\ns_barrier\n{SIG}\ns_waitcnt lgkmcnt(0)")
    a(f"v_mov_b32 v{TMP+1}, 0")
    if diag:
        a(f"s_memrealtime s[92:93]\ns_waitcnt lgkmcnt(0)\ns_sub_u32 s92, s92, s98\ns_sub_u32 s93, s98, s90")
        a(f"s_lshl_b32 s94, {sXC}, 5\ns_add_u32 s94, s94, {i}\ns_lshl_b32 s94, s94, 2\ns_add_u32 s94, s94, {w}\ns_lshl_b32 s94, s94, 4\ns_add_u32 s94, s94, {DIAG}")
        a(f"v_mov_b32 v20, s92\nv_mov_b32 v21, s93\nv_mov_b32 v22, s100\nv_mov_b32 v23, s101\nbuffer_store_dwordx4 v[20:23], v{TMP+1}, {WS}, s94 offen")
        if stamps:
            a(f"s_sub_u32 s94, s94, {DIAG}\ns_lshl_b32 s94, s94, 2\ns_add_u32 s94, s94, {DIAG + 0x4000}")
            for k in range(16): a(f"v_mov_b32 v{24+k}, s{64+k}")
            for k in range(4): a(f"buffer_store_dwordx4 {vr(24+4*k,4)}, v{TMP+1}, {WS}, s94 offen offset:{16*k}")
    a("s_endpgm")

import struct
def f2u(x): return struct.unpack("<I", struct.pack("<f", x))[0]
```

```python
import sys
from asmgen import *
from layout import *
from role_r import *
from role_g import *
from role_qa import *
KN = "interleave_layers__memory_aug_recurrent_mem_tr__glu_gated_geglu__prompt_kernel"

def prologue(a, diag):
    a("s_cmp_ge_u32 s2, 256\ns_cbranch_scc1 L_exit")
    a("s_load_dwordx16 s[64:79], s[0:1], 0\ns_load_dwordx8 s[80:87], s[0:1], 64\ns_load_dwordx4 s[88:91], s[0:1], 96")
    a(f"s_getreg_b32 {sXC}, hwreg(HW_REG_XCC_ID)\ns_and_b32 {sXC}, {sXC}, 15")
    a(f"v_readfirstlane_b32 {sW}, v0\ns_lshr_b32 {sW}, {sW}, 6\nv_and_b32 v0, 63, v0\ns_waitcnt lgkmcnt(0)")
    srd(a, 4, 90, WS_BYTES); srd(a, 12, 88, 256)
    if diag: a("s_memrealtime s[90:91]\ns_waitcnt lgkmcnt(0)")
    a(f"v_mov_b32 v2, 0\ns_cmp_lg_u32 {sW}, 0\ns_cbranch_scc1 L_tk")
    a(f"s_mov_b64 exec, 1\nv_mov_b32 v1, 1\ns_lshl_b32 s3, {sXC}, 5\nbuffer_atomic_add v1, v2, {DBG}, s3 offen sc0\ns_waitcnt vmcnt(0)\nds_write_b32 v2, v1\ns_waitcnt lgkmcnt(0)\ns_mov_b64 exec, -1")
    a.label("L_tk")
    a(f"s_barrier\nds_read_b32 v1, v2\ns_waitcnt lgkmcnt(0)\nv_readfirstlane_b32 {sSLOT}, v1\ns_barrier")
    a(f"s_cmp_ge_u32 {sSLOT}, 32\ns_cbranch_scc1 L_exit\ns_cmp_ge_u32 {sXC}, 8\ns_cbranch_scc1 L_exit")
    if diag == 2:
        a(f"s_lshl_b32 s91, {sXC}, 5\ns_add_u32 s91, s91, {sSLOT}\ns_lshl_b32 s91, s91, 2\ns_add_u32 s91, s91, {sW}\ns_lshl_b32 s91, s91, 12\ns_add_u32 s91, s91, {WS_END}\ns_mov_b32 s90, 0")
        trace(a, diag, 255, 0)

def finish(a):
    a.label("L_abort")
    a(f"v_mov_b32 v1, s3\nv_mov_b32 v2, 8\nbuffer_store_dword v1, v2, {DBG}, 0 offen sc1")
    a.label("L_exit")
    a("s_endpgm")

def gen_r_only(D=9, diag=True, sel=0, **kw):
    a = Asm()
    a("; @launch grid=(256,1,1) block=(256,1,1) lds=163840")
    a('.amdgcn_target "amdgcn-amd-amdhsa--gfx950"\n.text')
    a(kernel_header(KN))
    prologue(a, diag)
    a(f"s_cmp_lt_u32 {sXC}, 2\ns_cbranch_scc1 L_role_R")
    arrive(a); a("s_endpgm")
    role_R(a, D, diag, sel, **kw)
    finish(a)
    a.fix_fast()
    a('.section .rodata,"a"\n.p2align 6')
    a(kernel_desc(KN))
    return a.text()
HEADER = open("interleave_layers__memory_aug_recurrent_mem_tr__glu_gated_geglu__prompt.s.ref").read().split("; Override")[0] if __import__("os").path.exists("interleave_layers__memory_aug_recurrent_mem_tr__glu_gated_geglu__prompt.s.ref") else ""
PLACE1 = [[(2, 184), (4, 112), (8, 0), (8, 24), (10, 128)], [(2, 186), (4, 116), (8, 8), (18, 138)],
          [(2, 188), (4, 120), (8, 16), (8, 32), (10, 156)], [(2, 190), (4, 124), (8, 40), (18, 166)]]
DEFAULTS = dict(place=0, DN=dict(holdpub=True), GU=dict(holdpub=True), kv0=19, kvp=[1] * 6 + [0], pol_DN=' nt', d3=0)
def far(a, cond, label):
    a(f"s_cbranch_{cond} {label}")
def gen(D=10, diag=False, sel=None, opt=None, stamps=False):
    opt = dict(DEFAULTS, **(opt or {}))
    global PLACE1
    PLACE1 = opt.get('place1', PLACE1)
    import role_r; role_r.BACKOFF = opt.get('backoff', 0)
    a = Asm()
    a(HEADER.rstrip())
    a("; @launch grid=(256,1,1) block=(256,1,1) lds=163840")
    a('.amdgcn_target "amdgcn-amd-amdhsa--gfx950"\n.text')
    a(kernel_header(KN))
    prologue(a, diag)
    if opt.get('place', 1) == 0:
        a(f"s_mov_b32 s2, {sXC}\ns_cmp_lt_u32 {sXC}, 2\ns_cbranch_scc1 L_role_R")
        a(f"s_sub_u32 s20, {sXC}, 2\ns_lshl_b32 s21, s20, 3\ns_add_u32 s21, s21, {sSLOT}        ; x*8+slot")
        a(f"s_sub_u32 s22, {sSLOT}, 8\ns_mul_i32 s22, s22, 6\ns_add_u32 s22, s22, s20\ns_add_u32 s22, s22, 48")
        a(f"s_cmp_lt_u32 {sSLOT}, 8\ns_cselect_b32 s23, s21, s22")
    else:
        a(f"s_lshr_b32 s2, {sXC}, 1\ns_and_b32 s20, {sXC}, 5\ns_cmp_eq_u32 s20, 0\ns_cbranch_scc1 L_role_R\ns_mov_b32 s24, 0")
        for x, rows in enumerate(PLACE1):
            l = a.uniq("L_pl")
            a(f"s_cmp_lg_u32 {sXC}, {4 + x}\ns_cbranch_scc1 {l}")
            lo = 0
            for n, first in rows:
                a(f"s_cmp_ge_u32 {sSLOT}, {lo}\ns_cselect_b32 s24, {first - lo}, s24"); lo += n
            assert lo == 32
            a.label(l)
        a(f"s_add_u32 s23, s24, {sSLOT}")
        a(f"s_lshl_b32 s20, s2, 5\ns_add_u32 s20, s20, {sSLOT}\ns_add_u32 s20, s20, 48\ns_cmp_lt_u32 {sXC}, 4\ns_cselect_b32 s23, s20, s23")
    a(f"s_sub_u32 s21, s23, 64\ns_cmp_lt_u32 s23, 48\ns_cselect_b32 s21, s23, s21\ns_cbranch_scc1 L_ln0\ns_cmp_lt_u32 s23, 112\ns_cbranch_scc1 L_disp")
    a.label("L_ln0")
    a(f"s_lshl_b32 s21, s21, 2\ns_add_u32 s21, s21, {sW}")
    ln0(a, "s21", opt.get("pf", 0))
    a.label("L_disp")
    lo = 0
    for nm, n in (("WO", 24), ("DN", 24), ("PJ", 64), ("AT", 16), ("GU", 56)):
        a(f"s_sub_u32 {sU}, s23, {lo}\ns_cmp_lt_u32 {sU}, {n}\ns_cbranch_scc1 L_role_{nm}"); lo += n
    a(f"s_sub_u32 {sU}, s23, {lo}\ns_branch L_role_LN")
    post = order_mask(D + 1)
    kv = order_mask(opt.get('kv0', 16), opt.get('kvp'))
    role_LN(a, diag, opt)
    role_PJ(a, kv, diag, opt)
    role_AT(a, diag, opt, sel)
    finish(a)
    sk = opt.get("skew", (0, 1, 2))
    role_P(a, "WO", order_mask(D + 1 + sk[0]), diag, opt); role_P(a, "DN", order_mask(D + 1 + sk[2]), diag, opt)
    role_GU(a, order_mask(D + 1 + sk[1]), diag, opt)
    ro = dict(d3=4); ro.update(opt)
    role_R(a, D, diag, sel, stamps=stamps, opt=ro)
    a.fix_fast()
    a('.section .rodata,"a"\n.p2align 6')
    a(kernel_desc(KN))
    return a.text()
if __name__ == "__main__":
    open(sys.argv[1], "w").write(gen(diag=len(sys.argv) > 2))
```
